```python
import torch

def _softmax(x, axis=-1):
    return torch.softmax(x, dim=axis)
def _gelu(x):
    return torch.nn.functional.gelu(x, approximate="tanh")
def _silu(x):
    return torch.nn.functional.silu(x)
def _sigmoid(x):
    return torch.sigmoid(x)
def _layernorm(x, axis=-1, eps=1e-5):
    m = x.mean(dim=axis, keepdim=True)
    v = x.var(dim=axis, keepdim=True, unbiased=False)
    return (x - m) / torch.sqrt(v + eps)
def _scatter_add(tgt, idx, src, axis=0):
    return tgt.clone().index_add_(axis, idx, src)
def _segment_sum(src, seg, n):
    out = torch.zeros((n,) + src.shape[1:], dtype=src.dtype)
    return out.index_add_(0, seg, src)
def _pad(x, pw):
    flat = tuple(v for pair in reversed(pw) for v in pair)
    return torch.nn.functional.pad(x, flat)

kernel_name = 'standalone__gqa_block_cached__near_ridge'

def setup_inputs():

    _w = (lambda a: (lambda t: t.to(torch.bfloat16) if t.is_floating_point() else t)(torch.as_tensor(a)))
    B, Sq, D = 16, 32, 576
    Hq, Hkv, Sk, Dh = 32, 16, 32, 128
    assert Hq % Hkv == 0, (Hq, Hkv)
    return {
        "x": _w((lambda *s: torch.randn(*s, dtype=torch.bfloat16) * 0.8)(B, Sq, D)),
        "k_cache": _w((lambda *s: torch.randn(*s, dtype=torch.bfloat16) * 0.8)(B, Hkv, Sk, Dh)),
        "v_cache": _w((lambda *s: torch.randn(*s, dtype=torch.bfloat16) * 0.05)(B, Hkv, Sk, Dh)),
        "wq": _w((lambda *s: torch.randn(*s, dtype=torch.bfloat16) * 0.8)(D, Hq * Dh) * (D ** -0.5)),
        "wo": _w((lambda *s: torch.randn(*s, dtype=torch.bfloat16) * 0.05)(Hq * Dh, D) * ((Hq * Dh) ** -0.5)),
    }

def reference(x, k_cache, v_cache, wq, wo):
    B, Sq, D = x.shape
    Hq, Dh = 32, 128
    Hkv = k_cache.shape[1]
    rep = Hq // Hkv
    q = (lambda x, *d: x.permute(*d))((x @ wq).reshape(B, Sq, Hq, Dh), 0, 2, 1, 3)
    k = (lambda x, n, axis: torch.repeat_interleave(x, n, dim=axis))(k_cache, rep, axis=1)
    v = (lambda x, n, axis: torch.repeat_interleave(x, n, dim=axis))(v_cache, rep, axis=1)
    scores = torch.einsum("bhqd,bhkd->bhqk", q, k) * (Dh ** -0.5)
    p = _softmax(scores, axis=-1)
    o = torch.einsum("bhqk,bhkd->bhqd", p, v)
    return (lambda x, *d: x.permute(*d))(o, 0, 2, 1, 3).reshape(B, Sq, Hq * Dh) @ wo
```

```python
import sys

NAME = "standalone__gqa_block_cached__near_ridge"
HDR = open(f"cdna_kernels/{NAME}.s.ref").read().split("; Override launch")[0]

OPT = dict(stamps=0, rot=1)
for a in sys.argv[2:]:
    k, v = a.split("=")
    OPT[k] = int(v)

NPROD = 64
NCONS = 144
NWG = NPROD + NCONS
SPIN_MAX = 1 << 20


class Asm:
    def __init__(self):
        self.l = []
        self.vm = []
        self.lg = []
        self.uid = 0

    def e(self, s):
        self.l.append("    " + s)

    def c(self, s):
        self.l.append("    ; " + s)

    def label(self, s):
        self.l.append(s + ":")

    def newlabel(self, p):
        self.uid += 1
        return f"L_{p}_{self.uid}"

    def vmem(self, s, tag):
        self.e(s)
        self.vm.append(tag)
        assert len(self.vm) <= 63, "vmcnt overflow"

    def lds(self, s, tag):
        self.e(s)
        self.lg.append(tag)

    def _need(self, q, tags):
        idx = -1
        for i, t in enumerate(q):
            if t in tags:
                idx = i
        return idx

    def wait(self, vm=(), lg=(), lg0=False, vm0=False):
        parts = []
        if vm0:
            if self.vm:
                parts.append("vmcnt(0)")
            self.vm = []
        elif vm:
            i = self._need(self.vm, vm)
            if i >= 0:
                n = len(self.vm) - i - 1
                parts.append(f"vmcnt({n})")
                self.vm = self.vm[i + 1:]
        if lg0:
            if self.lg:
                parts.append("lgkmcnt(0)")
            self.lg = []
        elif lg:
            i = self._need(self.lg, lg)
            if i >= 0:
                n = len(self.lg) - i - 1
                n = min(n, 15)
                parts.append(f"lgkmcnt({n})")
                self.lg = self.lg[len(self.lg) - n:] if n else []
        if parts:
            self.e("s_waitcnt " + " ".join(parts))

    def nop(self, n):
        while n > 0:
            k = min(n, 16)
            self.e(f"s_nop {k-1}")
            n -= k


def vr(a, n=1):
    return f"v{a}" if n == 1 else f"v[{a}:{a+n-1}]"


def sr(a, n=1):
    return f"s{a}" if n == 1 else f"s[{a}:{a+n-1}]"


S_PTR = 4
P_X, P_K, P_V, P_WQ, P_WO, P_OUT, P_DBG, P_WS = [S_PTR + 2 * i for i in range(8)]
SRD_A = 20
SRD_B = 24
SRD_C = 28
SRD_WS = 32
SRD_DBG = 36
S_W = 40
S_B = 41
S_H = 42
S_T0 = 43
S_T1 = 44
S_T2 = 45
S_T3 = 46
S_M0A = 47
S_M0B = 48
S_OFFA = 49
S_OFFB = 50
S_OFFP = 51
S_CNT = 52
S_DONE = 53
S_C1 = 54
S_C2 = 55
S_ROT = 56
S_TAB = 60
S_STAMP = 84
S_EX = 86


def srd(a, d, p, nbytes):
    a.e(f"s_mov_b32 {sr(d)}, {sr(p)}")
    a.e(f"s_mov_b32 {sr(d+1)}, {sr(p+1)}")
    a.e(f"s_mov_b32 {sr(d+2)}, {nbytes:#x}")
    a.e(f"s_mov_b32 {sr(d+3)}, 0x00020000")


def stamp(a, idx, vtmp):
    if not OPT["stamps"]:
        return
    a.e(f"s_memrealtime {sr(S_STAMP,2)}")
    a.e("s_waitcnt lgkmcnt(0)")
    a.lg = []
    a.e(f"v_mov_b32 {vr(vtmp)}, {sr(S_STAMP)}")
    a.e(f"v_mov_b32 {vr(vtmp+1)}, {sr(S_STAMP+1)}")
    a.e(f"s_lshl_b32 {sr(S_STAMP)}, s2, 3")
    a.e(f"s_add_u32 {sr(S_STAMP)}, {sr(S_STAMP)}, {sr(S_W)}")
    a.e(f"s_lshl_b32 {sr(S_STAMP)}, {sr(S_STAMP)}, 7")
    a.e(f"s_add_u32 {sr(S_STAMP)}, {sr(S_STAMP)}, {0x400000 + idx*8:#x}")
    a.e(f"s_mov_b64 {sr(S_EX,2)}, exec")
    a.e("s_mov_b64 exec, 1")
    a.vmem(f"buffer_store_dwordx2 {vr(vtmp,2)}, off, {sr(SRD_WS,4)}, {sr(S_STAMP)}", "stamp")
    a.e(f"s_mov_b64 exec, {sr(S_EX,2)}")


def rowtile_dma_offsets(a, vdst, vl, vt, stride):
    t0, t1, t2 = vt, vt + 1, vt + 2
    a.e(f"v_lshrrev_b32 {vr(t0)}, 3, {vr(vl)}")
    a.e(f"s_movk_i32 {sr(S_T0)}, {stride}")
    a.e(f"v_mul_lo_u32 {vr(t0)}, {vr(t0)}, {sr(S_T0)}")
    a.e(f"v_lshrrev_b32 {vr(t1)}, 4, {vr(vl)}")
    a.e(f"v_and_b32 {vr(t2)}, 7, {vr(vl)}")
    a.e(f"v_xor_b32 {vr(t1)}, {vr(t1)}, {vr(t2)}")
    a.e(f"v_lshlrev_b32 {vr(t1)}, 4, {vr(t1)}")
    a.e(f"v_xor_b32 {vr(t2)}, 64, {vr(t1)}")
    a.e(f"v_add_u32 {vr(vdst)}, {vr(t0)}, {vr(t1)}")
    a.e(f"v_add_u32 {vr(t2)}, {vr(t0)}, {vr(t2)}")
    d = 8 * stride - 1024
    a.e(f"v_add_u32 {vr(vdst+1)}, {d}, {vr(t2)}")
    a.e(f"v_add_u32 {vr(vdst+2)}, {2*d}, {vr(vdst)}")
    a.e(f"v_add_u32 {vr(vdst+3)}, {3*d}, {vr(t2)}")


def rowtile_read_addrs(a, vdst, vl, vt, sbase):
    t0, t1, t2 = vt, vt + 1, vt + 2
    a.e(f"v_and_b32 {vr(t0)}, 31, {vr(vl)}")
    a.e(f"v_bfe_u32 {vr(t1)}, {vr(vl)}, 1, 3")
    a.e(f"v_lshrrev_b32 {vr(t2)}, 5, {vr(vl)}")
    a.e(f"v_xor_b32 {vr(t1)}, {vr(t1)}, {vr(t2)}")
    a.e(f"v_lshlrev_b32 {vr(t1)}, 4, {vr(t1)}")
    a.e(f"v_lshlrev_b32 {vr(t0)}, 7, {vr(t0)}")
    a.e(f"v_add_u32 {vr(t0)}, {sr(sbase)}, {vr(t0)}")
    for s in range(4):
        if s:
            a.e(f"v_xor_b32 {vr(t2)}, {32*s}, {vr(t1)}")
            a.e(f"v_add_u32 {vr(vdst+s)}, {vr(t0)}, {vr(t2)}")
        else:
            a.e(f"v_add_u32 {vr(vdst)}, {vr(t0)}, {vr(t1)}")


MFMA = "v_mfma_f32_32x32x16_bf16"


def producer(a):
    V_L = 1
    V_T = 2
    V_DW = 8
    V_DX = 10
    V_DK = 14
    V_RA = 18
    V_RB = 22
    V_PO = 26
    V_CLR = 28
    V_ACC = 32
    V_FA = 96
    V_FB = 128
    V_KF = 136
    V_S = 168
    V_E = 184
    XBASE = 49152

    a.label("L_producer")
    a.e(f"s_and_b32 {sr(S_T0)}, s2, 7")
    a.e(f"s_lshr_b32 {sr(S_T1)}, s2, 3")
    a.e(f"s_lshl_b32 {sr(S_H)}, {sr(S_T0)}, 2")
    a.e(f"s_and_b32 {sr(S_T2)}, {sr(S_T1)}, 3")
    a.e(f"s_add_u32 {sr(S_H)}, {sr(S_H)}, {sr(S_T2)}")
    a.e(f"s_lshr_b32 {sr(S_T3)}, {sr(S_T1)}, 2")
    a.e(f"s_lshl_b32 {sr(S_B)}, {sr(S_T3)}, 3")
    a.e(f"s_add_u32 {sr(S_B)}, {sr(S_B)}, {sr(S_W)}")
    a.e(f"s_lshl_b32 {sr(S_CNT)}, {sr(S_H)}, 1")
    a.e(f"s_add_u32 {sr(S_CNT)}, {sr(S_CNT)}, {sr(S_T3)}")
    a.e(f"s_lshl_b32 {sr(S_CNT)}, {sr(S_CNT)}, 2")
    if OPT["rot"]:
        a.e(f"s_mov_b32 {sr(S_ROT)}, {sr(S_T1)}")
    else:
        a.e(f"s_mov_b32 {sr(S_ROT)}, 0")
    a.e(f"s_lshl_b32 {sr(S_OFFA)}, {sr(S_H)}, 8")
    a.e(f"s_lshl_b32 {sr(S_T0)}, {sr(S_ROT)}, 19")
    a.e(f"s_add_u32 {sr(S_OFFA)}, {sr(S_OFFA)}, {sr(S_T0)}")
    a.e(f"s_mul_i32 {sr(S_OFFB)}, {sr(S_B)}, 36864")
    a.e(f"s_lshl_b32 {sr(S_T0)}, {sr(S_ROT)}, 7")
    a.e(f"s_add_u32 {sr(S_OFFB)}, {sr(S_OFFB)}, {sr(S_T0)}")
    a.e(f"s_lshl_b32 {sr(S_OFFP)}, {sr(S_B)}, 5")
    a.e(f"s_add_u32 {sr(S_OFFP)}, {sr(S_OFFP)}, {sr(S_H)}")
    a.e(f"s_lshl_b32 {sr(S_OFFP)}, {sr(S_OFFP)}, 11")
    a.e(f"s_lshl_b32 {sr(S_M0A)}, {sr(S_W)}, 11")
    a.e(f"s_mul_i32 {sr(S_M0B)}, {sr(S_W)}, 12288")
    a.e(f"s_add_u32 {sr(S_M0B)}, {sr(S_M0B)}, {XBASE}")
    a.e(f"s_lshl_b32 {sr(S_TAB)}, {sr(S_B)}, 17")
    a.e(f"s_lshr_b32 {sr(S_T0)}, {sr(S_H)}, 1")
    a.e(f"s_lshl_b32 {sr(S_T0)}, {sr(S_T0)}, 13")
    a.e(f"s_add_u32 {sr(S_TAB)}, {sr(S_TAB)}, {sr(S_T0)}")
    a.e(f"s_add_u32 {sr(S_TAB+1)}, {sr(S_TAB)}, 128")
    t0, t1, t2 = V_T, V_T + 1, V_T + 2
    a.e(f"v_lshrrev_b32 {vr(t0)}, 4, {vr(V_L)}")
    a.e(f"v_lshlrev_b32 {vr(t1)}, 2, {vr(t0)}")
    a.e(f"v_and_b32 {vr(t2)}, 15, {vr(V_L)}")
    a.e(f"v_xor_b32 {vr(t1)}, {vr(t1)}, {vr(t2)}")
    a.e(f"v_lshlrev_b32 {vr(t1)}, 4, {vr(t1)}")
    a.e(f"v_lshlrev_b32 {vr(t0)}, 13, {vr(t0)}")
    a.e(f"s_lshl_b32 {sr(S_T0)}, {sr(S_W)}, 16")
    a.e(f"v_add3_u32 {vr(V_DW)}, {vr(t0)}, {vr(t1)}, {sr(S_T0)}")
    a.e(f"v_add_u32 {vr(V_DW+1)}, {4*8192-1024}, {vr(V_DW)}")
    rowtile_dma_offsets(a, V_DX, V_L, V_T, 1152)
    a.e(f"v_lshlrev_b32 {vr(V_PO)}, 4, {vr(V_L)}")
    for i in range(4):
        a.e(f"v_mov_b32 {vr(V_CLR+i)}, -1")
    a.e("s_waitcnt lgkmcnt(0)")
    srd(a, SRD_A, P_WQ, 4718592)
    srd(a, SRD_B, P_X, 589824)
    srd(a, SRD_WS, P_WS, 0x800000)

    def dma_list(c):
        out = []
        slot = c % 3
        tag = ("ch", c)
        if c <= 8:
            g = [f"s_add_u32 m0, {sr(S_M0A)}, {slot*16384}"]
            out.append((g, None))
            for i in range(2):
                out.append(([f"buffer_load_dwordx4 {vr(V_DW+i)}, {sr(SRD_A,4)}, {sr(S_OFFA)} offen offset:{1024*i} lds"], tag))
            out.append(([f"s_add_u32 m0, {sr(S_M0B)}, {slot*4096}"], None))
            for i in range(4):
                out.append(([f"buffer_load_dwordx4 {vr(V_DX+i)}, {sr(SRD_B,4)}, {sr(S_OFFB)} offen offset:{1024*i} lds"], tag))
            if c < 8:
                adv = [f"s_add_u32 {sr(S_ROT)}, {sr(S_ROT)}, 1",
                       f"s_cmp_eq_u32 {sr(S_ROT)}, 9",
                       f"s_cselect_b32 {sr(S_T0)}, {sr(S_C1)}, 0x80000",
                       f"s_cselect_b32 {sr(S_T1)}, {sr(S_C2)}, 128",
                       f"s_add_u32 {sr(S_OFFA)}, {sr(S_OFFA)}, {sr(S_T0)}",
                       f"s_add_u32 {sr(S_OFFB)}, {sr(S_OFFB)}, {sr(S_T1)}"]
                out.append((adv, None))
        else:
            out.append(([f"s_add_u32 m0, {sr(S_M0B)}, {slot*4096}"], None))
            for i in range(4):
                out.append(([f"buffer_load_dwordx4 {vr(V_DK+i)}, {sr(SRD_C,4)}, {sr(S_TAB+(c-9))} offen offset:{1024*i} lds"], tag))
        return out

    def emit_group(g):
        ins, tag = g
        if tag is None:
            for s in ins:
                a.e(s)
            if ins[-1].startswith("s_add_u32 m0"):
                a.e("s_nop 0")
        else:
            for s in ins:
                a.vmem(s, tag)

    a.e(f"s_mov_b32 {sr(S_C1)}, {(-8*0x80000) & 0xffffffff:#x}")
    a.e(f"s_mov_b32 {sr(S_C2)}, {(-8*128) & 0xffffffff:#x}")
    for g in dma_list(0):
        emit_group(g)
    for u in range(2):
        a.vmem(f"buffer_store_dwordx4 {vr(V_CLR,4)}, {vr(V_PO)}, {sr(SRD_WS,4)}, {sr(S_OFFP)} offen offset:{1024*u} sc1", "clr")
    for c in (1, 2):
        for g in dma_list(c):
            emit_group(g)
    srd(a, SRD_C, P_K, 2097152)
    srd(a, SRD_DBG, P_DBG, 256)
    stamp(a, 0, V_E)
    rowtile_dma_offsets(a, V_DK, V_L, V_T, 256)
    rowtile_read_addrs(a, V_RB, V_L, V_T, S_M0B)
    t0, t1, t2, t3 = V_T, V_T + 1, V_T + 2, V_T + 3
    a.e(f"v_bfe_u32 {vr(t0)}, {vr(V_L)}, 2, 2")
    a.e(f"v_lshrrev_b32 {vr(t1)}, 5, {vr(V_L)}")
    a.e(f"v_lshlrev_b32 {vr(t1)}, 11, {vr(t1)}")
    a.e(f"v_lshl_add_u32 {vr(t1)}, {vr(t0)}, 8, {vr(t1)}")
    a.e(f"v_bfe_u32 {vr(t2)}, {vr(V_L)}, 4, 1")
    a.e(f"v_lshl_add_u32 {vr(t1)}, {vr(t2)}, 5, {vr(t1)}")
    a.e(f"v_and_b32 {vr(t2)}, 1, {vr(V_L)}")
    a.e(f"v_lshl_add_u32 {vr(t1)}, {vr(t2)}, 4, {vr(t1)}")
    a.e(f"v_bfe_u32 {vr(t2)}, {vr(V_L)}, 1, 1")
    a.e(f"v_lshl_add_u32 {vr(t1)}, {vr(t2)}, 3, {vr(t1)}")
    for t in range(4):
        a.e(f"v_xor_b32 {vr(t2)}, {t}, {vr(t0)}")
        a.e(f"v_lshl_add_u32 {vr(V_RA+t)}, {vr(t2)}, 6, {vr(t1)}")

    def reads(n):
        c, s = n >> 2, n & 3
        slot = c % 3
        buf = n & 1
        r = []
        r.append((f"ds_read_b128 {vr(V_FB+4*buf,4)}, {vr(V_RB+s)} offset:{slot*4096}", ("B", n)))
        for t in range(4):
            for j2 in range(2):
                r.append((f"ds_read_b64_tr_b16 {vr(V_FA+16*buf+4*t+2*j2,2)}, {vr(V_RA+t)} offset:{slot*16384+s*4096+j2*1024}", ("A", n, t)))
        return r

    a.wait(vm=[("ch", 0)])
    a.e("s_barrier")
    stamp(a, 1, V_E)
    for ins, tag in reads(0):
        a.lds(ins, tag)
    pend_dma = []
    for n in range(36):
        c, s = n >> 2, n & 3
        buf = n & 1
        nxt = reads(n + 1) if n + 1 < 36 else []
        if s == 3 and n + 1 < 36:
            a.wait(vm=[("ch", c + 1)], lg0=True)
            a.e("s_barrier")
            if c + 3 <= 10:
                pend_dma += dma_list(c + 3)
            if c + 1 == 1:
                lab = a.newlabel("noflag")
                a.e(f"s_cmp_lg_u32 {sr(S_W)}, 0")
                a.e(f"s_cbranch_scc1 {lab}")
                a.e("s_mov_b64 exec, 1")
                a.e(f"v_mov_b32 {vr(V_T)}, 1")
                a.e(f"buffer_store_dword {vr(V_T)}, off, {sr(SRD_DBG,4)}, {sr(S_CNT)} sc1")
                a.e("s_mov_b64 exec, -1")
                a.label(lab)
        for t in range(4):
            a.wait(lg=[("B", n), ("A", n, t)])
            cin = "0" if n == 0 else vr(V_ACC + 16 * t, 16)
            a.e(f"{MFMA} {vr(V_ACC+16*t,16)}, {vr(V_FA+16*buf+4*t,4)}, {vr(V_FB+4*buf,4)}, {cin}")
            for _ in range(3):
                if nxt:
                    ins, tag = nxt.pop(0)
                    a.lds(ins, tag)
            k = 0
            while pend_dma and k < 1:
                g = pend_dma.pop(0)
                emit_group(g)
                if g[1] is not None:
                    k += 1
    assert not pend_dma
    stamp(a, 2, V_E)
    a.wait(vm0=True)
    for s8 in range(8):
        slot = (9 + (s8 >> 2)) % 3
        a.lds(f"ds_read_b128 {vr(V_KF+4*s8,4)}, {vr(V_RB+(s8&3))} offset:{slot*4096}", ("K", s8))
    a.nop(4)
    def cvt_tile(t):
        for i in range(8):
            b = V_ACC + 16 * t
            a.e(f"v_cvt_pk_bf16_f32 {vr(b+i)}, {vr(b+2*i)}, {vr(b+2*i+1)}")
    cvt_tile(0)
    cvt_tile(1)
    for t in range(4):
        for u in range(2):
            s8 = 2 * t + u
            a.wait(lg=[("K", s8)])
            cin = "0" if s8 == 0 else vr(V_S, 16)
            a.e(f"{MFMA} {vr(V_S,16)}, {vr(V_KF+4*s8,4)}, {vr(V_ACC+16*t+4*u,4)}, {cin}")
        if t + 2 < 4:
            cvt_tile(t + 2)
            if t + 2 == 3:
                pass
    a.e(f"s_mov_b32 {sr(S_C1)}, 0x3e0293ee")
    a.e(f"s_mov_b32 {sr(S_C2)}, 0x7fff7fff")
    a.nop(14)
    S = V_S
    E = V_E
    a.e(f"v_max3_f32 {vr(E)}, {vr(S)}, {vr(S+1)}, {vr(S+2)}")
    a.e(f"v_max3_f32 {vr(E+1)}, {vr(S+3)}, {vr(S+4)}, {vr(S+5)}")
    a.e(f"v_max3_f32 {vr(E+2)}, {vr(S+6)}, {vr(S+7)}, {vr(S+8)}")
    a.e(f"v_max3_f32 {vr(E+3)}, {vr(S+9)}, {vr(S+10)}, {vr(S+11)}")
    a.e(f"v_max3_f32 {vr(E+4)}, {vr(S+12)}, {vr(S+13)}, {vr(S+14)}")
    a.e(f"v_max3_f32 {vr(E)}, {vr(E)}, {vr(E+1)}, {vr(S+15)}")
    a.e(f"v_max3_f32 {vr(E+2)}, {vr(E+2)}, {vr(E+3)}, {vr(E+4)}")
    a.e(f"v_max_f32 {vr(E)}, {vr(E)}, {vr(E+2)}")
    a.e(f"v_mov_b32 {vr(E+1)}, {vr(E)}")
    a.nop(2)
    a.e(f"v_permlane32_swap_b32 {vr(E)}, {vr(E+1)}")
    a.nop(1)
    a.e(f"v_max_f32 {vr(E)}, {vr(E)}, {vr(E+1)}")
    a.e(f"v_mul_f32 {vr(E)}, {sr(S_C1)}, {vr(E)}")
    for i in range(16):
        a.e(f"v_fma_f32 {vr(S+i)}, {vr(S+i)}, {sr(S_C1)}, -{vr(E)}")
    for i in range(16):
        a.e(f"v_exp_f32 {vr(S+i)}, {vr(S+i)}")
    a.nop(1)
    for i in range(8):
        a.e(f"v_add_f32 {vr(E+i)}, {vr(S+2*i)}, {vr(S+2*i+1)}")
    for i in range(4):
        a.e(f"v_add_f32 {vr(E+i)}, {vr(E+i)}, {vr(E+4+i)}")
    a.e(f"v_add_f32 {vr(E)}, {vr(E)}, {vr(E+2)}")
    a.e(f"v_add_f32 {vr(E+1)}, {vr(E+1)}, {vr(E+3)}")
    a.e(f"v_add_f32 {vr(E)}, {vr(E)}, {vr(E+1)}")
    a.e(f"v_mov_b32 {vr(E+1)}, {vr(E)}")
    a.nop(2)
    a.e(f"v_permlane32_swap_b32 {vr(E)}, {vr(E+1)}")
    a.nop(1)
    a.e(f"v_add_f32 {vr(E)}, {vr(E)}, {vr(E+1)}")
    a.e(f"v_rcp_f32 {vr(E)}, {vr(E)}")
    a.nop(1)
    for i in range(16):
        a.e(f"v_mul_f32 {vr(S+i)}, {vr(S+i)}, {vr(E)}")
    for i in range(8):
        a.e(f"v_cvt_pk_bf16_f32 {vr(E+4+i)}, {vr(S+2*i)}, {vr(S+2*i+1)}")
    for i in range(8):
        a.e(f"v_and_b32 {vr(E+4+i)}, {sr(S_C2)}, {vr(E+4+i)}")
    for u in range(2):
        a.vmem(f"buffer_store_dwordx4 {vr(E+4+4*u,4)}, {vr(V_PO)}, {sr(SRD_WS,4)}, {sr(S_OFFP)} offen offset:{1024*u} sc1", "p")
    stamp(a, 3, V_T)
    a.wait(vm0=True)
    stamp(a, 4, V_T)
    a.wait(vm0=True)
    a.e("s_endpgm")


def consumer(a):
    V_L = 1
    V_T = 2
    V_DW = 8
    V_DV = 12
    V_RW = 16
    V_RV = 18
    V_PO = 22
    V_FL = 23
    V_FV = 24
    V_OO = 25
    V_X = 26
    V_ACC = 32
    V_D1 = 64
    V_P = 128
    V_VF = 160
    V_WF = 224
    a.vm = []
    a.lg = []
    a.label("L_consumer")
    a.e(f"s_and_b32 {sr(S_T0)}, s2, 7")
    a.e(f"s_lshr_b32 {sr(S_T1)}, s2, 3")
    a.e(f"s_sub_u32 {sr(S_T1)}, {sr(S_T1)}, {NPROD//8}")
    a.e(f"s_mul_i32 {sr(S_T2)}, {sr(S_T1)}, 43")
    a.e(f"s_lshr_b32 {sr(S_T2)}, {sr(S_T2)}, 7")
    a.e(f"s_mul_i32 {sr(S_T3)}, {sr(S_T2)}, 3")
    a.e(f"s_sub_u32 {sr(S_T3)}, {sr(S_T1)}, {sr(S_T3)}")
    if OPT["rot"]:
        a.e(f"s_add_u32 {sr(S_ROT)}, {sr(S_T2)}, {sr(S_T3)}")
    else:
        a.e(f"s_mov_b32 {sr(S_ROT)}, 0")
    a.e(f"s_mul_i32 {sr(S_T0)}, {sr(S_T0)}, 6")
    a.e(f"s_add_u32 {sr(S_T0)}, {sr(S_T0)}, {sr(S_T2)}")
    a.e(f"s_and_b32 {sr(S_B)}, {sr(S_T0)}, 15")
    a.e(f"s_lshr_b32 {sr(S_T0)}, {sr(S_T0)}, 4")
    a.e(f"s_mul_i32 {sr(S_T0)}, {sr(S_T0)}, 3")
    a.e(f"s_add_u32 {sr(S_H)}, {sr(S_T0)}, {sr(S_T3)}")
    a.e(f"s_mul_i32 {sr(S_M0A)}, {sr(S_W)}, 20480")
    SW = S_TAB
    SV = S_TAB + 8
    SP = S_TAB + 12
    a.e(f"s_and_b32 {sr(S_ROT)}, {sr(S_ROT)}, 7")
    a.e(f"s_brev_b32 {sr(S_ROT)}, {sr(S_ROT)}")
    a.e(f"s_lshr_b32 {sr(S_ROT)}, {sr(S_ROT)}, 29")
    a.e(f"s_lshl_b32 {sr(S_T0)}, {sr(S_W)}, 3")
    a.e(f"s_lshl_b32 {sr(S_T1)}, {sr(S_H)}, 7")
    for p in range(8):
        a.e(f"s_xor_b32 {sr(S_T2)}, {sr(S_ROT)}, {p}")
        a.e(f"s_add_u32 {sr(S_T2)}, {sr(S_T2)}, {sr(S_T0)}")
        a.e(f"s_mul_i32 {sr(S_T2)}, {sr(S_T2)}, {64*1152}")
        a.e(f"s_add_u32 {sr(SW+p)}, {sr(S_T2)}, {sr(S_T1)}")
    a.e(f"s_lshl_b32 {sr(S_T0)}, {sr(S_B)}, 17")
    a.e(f"s_lshl_b32 {sr(S_T1)}, {sr(S_W)}, 14")
    a.e(f"s_add_u32 {sr(S_T0)}, {sr(S_T0)}, {sr(S_T1)}")
    a.e(f"s_and_b32 {sr(S_T1)}, {sr(S_ROT)}, 4")
    a.e(f"s_lshl_b32 {sr(S_T1)}, {sr(S_T1)}, 11")
    a.e(f"s_and_b32 {sr(S_T2)}, {sr(S_ROT)}, 1")
    a.e(f"s_lshl_b32 {sr(S_T2)}, {sr(S_T2)}, 7")
    a.e(f"s_or_b32 {sr(S_T1)}, {sr(S_T1)}, {sr(S_T2)}")
    for i in range(2):
        for hf in range(2):
            a.e(f"s_xor_b32 {sr(S_T2)}, {sr(S_T1)}, {i*8192+hf*128}")
            a.e(f"s_add_u32 {sr(SV+2*i+hf)}, {sr(S_T0)}, {sr(S_T2)}")
    a.e(f"s_lshl_b32 {sr(S_T0)}, {sr(S_B)}, 5")
    a.e(f"s_lshl_b32 {sr(S_T1)}, {sr(S_W)}, 2")
    a.e(f"s_add_u32 {sr(S_T0)}, {sr(S_T0)}, {sr(S_T1)}")
    a.e(f"s_lshr_b32 {sr(S_T1)}, {sr(S_ROT)}, 1")
    for q in range(4):
        a.e(f"s_xor_b32 {sr(S_T2)}, {sr(S_T1)}, {q}")
        a.e(f"s_add_u32 {sr(S_T2)}, {sr(S_T2)}, {sr(S_T0)}")
        a.e(f"s_lshl_b32 {sr(SP+q)}, {sr(S_T2)}, 11")
    rowtile_dma_offsets(a, V_DV, V_L, V_T, 256)
    t0, t1, t2 = V_T, V_T + 1, V_T + 2
    a.e(f"v_lshrrev_b32 {vr(t0)}, 3, {vr(V_L)}")
    a.e(f"s_movk_i32 {sr(S_T0)}, 1152")
    a.e(f"v_mul_lo_u32 {vr(t0)}, {vr(t0)}, {sr(S_T0)}")
    a.e(f"v_bfe_u32 {vr(t1)}, {vr(V_L)}, 4, 1")
    a.e(f"v_lshlrev_b32 {vr(t1)}, 2, {vr(t1)}")
    a.e(f"v_and_b32 {vr(t2)}, 7, {vr(V_L)}")
    a.e(f"v_xor_b32 {vr(t1)}, {vr(t1)}, {vr(t2)}")
    a.e(f"v_lshl_add_u32 {vr(V_DW)}, {vr(t1)}, 4, {vr(t0)}")
    for i in range(1, 4):
        a.e(f"v_add_u32 {vr(V_DW+i)}, {i*(8*1152-1024)}, {vr(V_DW)}")
    a.e("s_waitcnt lgkmcnt(0)")
    srd(a, SRD_A, P_WO, 4718592)
    srd(a, SRD_C, P_V, 2097152)

    items = []
    for i in range(2):
        items += [("V", i, 0), ("V", i, 1)]
        for hq in range(2):
            for j in range(4):
                items.append(("W", i, hq, j))
    NI = len(items)
    NSLOT = 5

    def dma(n):
        it = items[n]
        slot = n % NSLOT
        g = []
        if it[0] == "V":
            g.append(([f"s_add_u32 m0, {sr(S_M0A)}, {slot*4096}", "s_nop 0"], None))
            for k in range(4):
                g.append(([f"buffer_load_dwordx4 {vr(V_DV+k)}, {sr(SRD_C,4)}, {sr(SV+2*it[1]+it[2])} offen offset:{1024*k} lds"], ("it", n)))
        else:
            _, i, hq, j = it
            p = i * 4 + hq * 2 + (j >> 1)
            if j & 1:
                g.append(([f"s_add_u32 m0, {sr(S_M0A)}, {slot*4096}", f"s_add_u32 {sr(S_OFFA)}, {sr(SW+p)}, {32*1152}"], None))
                so = S_OFFA
            else:
                g.append(([f"s_add_u32 m0, {sr(S_M0A)}, {slot*4096}", "s_nop 0"], None))
                so = SW + p
            for k in range(4):
                g.append(([f"buffer_load_dwordx4 {vr(V_DW+k)}, {sr(SRD_A,4)}, {sr(so)} offen offset:{1024*k} lds"], ("it", n)))
        return g

    def emit_group(g):
        ins, tag = g
        for s in ins:
            if tag is None:
                a.e(s)
            else:
                a.vmem(s, tag)

    for n in range(NSLOT):
        for g in dma(n):
            emit_group(g)
    srd(a, SRD_WS, P_WS, 0x800000)
    srd(a, SRD_DBG, P_DBG, 256)
    srd(a, SRD_B, P_OUT, 589824)
    stamp(a, 0, V_X)
    rowtile_read_addrs(a, V_RV, V_L, V_T, S_M0A)
    a.e(f"v_bfe_u32 {vr(t0)}, {vr(V_L)}, 2, 2")
    a.e(f"v_lshrrev_b32 {vr(t1)}, 5, {vr(V_L)}")
    a.e(f"v_lshlrev_b32 {vr(t1)}, 10, {vr(t1)}")
    a.e(f"v_lshl_add_u32 {vr(t1)}, {vr(t0)}, 7, {vr(t1)}")
    a.e(f"v_bfe_u32 {vr(t2)}, {vr(V_L)}, 4, 1")
    a.e(f"v_lshl_add_u32 {vr(t1)}, {vr(t2)}, 5, {vr(t1)}")
    a.e(f"v_and_b32 {vr(t2)}, 1, {vr(V_L)}")
    a.e(f"v_lshl_add_u32 {vr(t1)}, {vr(t2)}, 4, {vr(t1)}")
    a.e(f"v_bfe_u32 {vr(t2)}, {vr(V_L)}, 1, 1")
    a.e(f"v_lshl_add_u32 {vr(t1)}, {vr(t2)}, 3, {vr(t1)}")
    a.e(f"v_add_u32 {vr(t1)}, {sr(S_M0A)}, {vr(t1)}")
    a.e(f"v_bfe_u32 {vr(t2)}, {vr(V_L)}, 3, 1")
    a.e(f"v_lshl_add_u32 {vr(V_RW)}, {vr(t2)}, 6, {vr(t1)}")
    a.e(f"v_xor_b32 {vr(t2)}, 1, {vr(t2)}")
    a.e(f"v_lshl_add_u32 {vr(V_RW+1)}, {vr(t2)}, 6, {vr(t1)}")
    a.e(f"v_lshlrev_b32 {vr(V_PO)}, 4, {vr(V_L)}")
    a.e(f"v_and_b32 {vr(t0)}, 3, {vr(V_L)}")
    a.e(f"s_lshl_b32 {sr(S_T0)}, {sr(S_W)}, 5")
    a.e(f"s_lshr_b32 {sr(S_T1)}, {sr(S_B)}, 3")
    a.e(f"s_lshl_b32 {sr(S_T1)}, {sr(S_T1)}, 2")
    a.e(f"s_add_u32 {sr(S_T0)}, {sr(S_T0)}, {sr(S_T1)}")
    a.e(f"v_lshl_add_u32 {vr(V_FL)}, {vr(t0)}, 3, {sr(S_T0)}")
    a.e(f"v_and_b32 {vr(t0)}, 31, {vr(V_L)}")
    a.e(f"s_movk_i32 {sr(S_T0)}, 1152")
    a.e(f"v_mul_lo_u32 {vr(t0)}, {vr(t0)}, {sr(S_T0)}")
    a.e(f"v_lshrrev_b32 {vr(t1)}, 5, {vr(V_L)}")
    a.e(f"v_lshl_add_u32 {vr(V_OO)}, {vr(t1)}, 4, {vr(t0)}")
    a.e(f"s_mul_i32 {sr(S_OFFB)}, {sr(S_B)}, 36864")
    a.e(f"s_lshl_b32 {sr(S_T0)}, {sr(S_H)}, 7")
    a.e(f"s_add_u32 {sr(S_OFFB)}, {sr(S_OFFB)}, {sr(S_T0)}")
    a.e(f"s_lshr_b32 {sr(S_T0)}, {sr(S_W)}, 1")
    a.e(f"s_lshl_b32 {sr(S_T0)}, {sr(S_T0)}, 5")
    a.e(f"s_add_u32 {sr(S_OFFB)}, {sr(S_OFFB)}, {sr(S_T0)}")
    a.e(f"s_and_b32 {sr(S_T0)}, {sr(S_W)}, 1")
    a.e(f"s_lshl_b32 {sr(S_T0)}, {sr(S_T0)}, 3")
    a.e(f"s_add_u32 {sr(S_OFFB)}, {sr(S_OFFB)}, {sr(S_T0)}")

    wcount = [0]
    wbuf = {}

    def reads(n):
        it = items[n]
        slot = n % NSLOT
        r = []
        if it[0] == "V":
            _, i, hf = it
            for s in range(4):
                r.append((f"ds_read_b128 {vr(V_VF+32*i+16*hf+4*s,4)}, {vr(V_RV+s)} offset:{slot*4096}", ("rd", n)))
        else:
            buf = wcount[0] & 1
            wcount[0] += 1
            wbuf[n] = buf
            for s in range(2):
                for nt in range(2):
                    for j2 in range(2):
                        r.append((f"ds_read_b64_tr_b16 {vr(V_WF+16*buf+8*s+4*nt+2*j2,2)}, {vr(V_RW+nt)} offset:{slot*4096+s*2048+j2*512}", ("rd", n)))
        return r

    def p_loads(q, tag):
        for u in range(2):
            a.vmem(f"buffer_load_dwordx4 {vr(V_P+8*q+4*u,4)}, {vr(V_PO)}, {sr(SRD_WS,4)}, {sr(SP+q)} offen offset:{1024*u} sc1", tag)

    FLAG_AT = 8
    a.wait(vm=[("it", 0)])
    stamp(a, 1, V_X)
    for ins, tag in reads(0):
        a.lds(ins, tag)
    for n in range(NI):
        it = items[n]
        a.wait(lg=[("rd", n)])
        pend = dma(n + NSLOT) if n + NSLOT < NI else []
        mf = []
        if it[0] == "W":
            _, i, hq, j = it
            buf = wbuf[n]
            for s in range(2):
                for nt in range(2):
                    ks = 2 * j + s
                    cin = "0" if ks == 0 else vr(V_ACC + 16 * nt, 16)
                    mf.append(f"{MFMA} {vr(V_ACC+16*nt,16)}, {vr(V_VF+32*i+4*ks,4)}, {vr(V_WF+16*buf+8*s+4*nt,4)}, {cin}")
        if mf:
            a.e(mf.pop(0))
        for g in pend[:3]:
            emit_group(g)
        if mf:
            a.e(mf.pop(0))
        for g in pend[3:]:
            emit_group(g)
        if n == FLAG_AT:
            a.vmem(f"buffer_load_dword {vr(V_FV)}, {vr(V_FL)}, {sr(SRD_DBG,4)}, 0 offen sc1", "flag")
        if n == NI - NSLOT:
            a.wait(vm=["flag"])
            ok = a.newlabel("flagok")
            lp = a.newlabel("flagloop")
            a.e(f"v_cmp_eq_u32 vcc, 0, {vr(V_FV)}")
            a.e(f"s_cbranch_vccz {ok}")
            a.e(f"s_mov_b32 {sr(S_CNT)}, {SPIN_MAX}")
            a.label(lp)
            a.e(f"buffer_load_dword {vr(V_FV)}, {vr(V_FL)}, {sr(SRD_DBG,4)}, 0 offen sc1")
            a.e(f"s_sub_u32 {sr(S_CNT)}, {sr(S_CNT)}, 1")
            a.e(f"s_cbranch_scc1 {ok}")
            a.e("s_waitcnt vmcnt(0)")
            a.e(f"v_cmp_eq_u32 vcc, 0, {vr(V_FV)}")
            a.e(f"s_cbranch_vccnz {lp}")
            a.label(ok)
            for q in range(4):
                p_loads(q, ("p", q))
        if n + 1 < NI:
            a.wait(vm=[("it", n + 1)])
            rd = reads(n + 1)
        else:
            rd = []
        for ins, tag in rd[:4]:
            a.lds(ins, tag)
        if mf:
            a.e(mf.pop(0))
        for ins, tag in rd[4:]:
            a.lds(ins, tag)
        if mf:
            a.e(mf.pop(0))
        if it[0] == "W" and it[3] == 3:
            q = 2 * it[1] + it[2]
            a.nop(12)
            for nt in range(2):
                for i8 in range(8):
                    b = V_ACC + 16 * nt
                    a.e(f"v_cvt_pk_bf16_f32 {vr(V_D1+16*q+8*nt+i8)}, {vr(b+2*i8)}, {vr(b+2*i8+1)}")
    stamp(a, 2, V_X)
    if OPT["stamps"]:
        a.wait(vm0=True)
        for q in range(4):
            p_loads(q, ("p", q))
    assert a.vm == [("p", q) for q in range(4) for _ in range(2)], a.vm
    for i in range(32):
        a.e(f"v_mov_b32 {vr(V_ACC+i)}, 0")
    a.e(f"s_mov_b32 {sr(S_DONE)}, 0")
    a.e(f"s_mov_b32 {sr(S_CNT)}, {SPIN_MAX}")
    a.label("L_ploop")
    X = V_X
    for q in range(4):
        cheap = a.newlabel("cheap")
        reload_ = a.newlabel("reload")
        nxt = a.newlabel("pn")
        P = V_P + 8 * q
        a.e("s_waitcnt vmcnt(6)")
        a.e(f"s_bitcmp1_b32 {sr(S_DONE)}, {q}")
        a.e(f"s_cbranch_scc1 {cheap}")
        a.e(f"v_or3_b32 {vr(X)}, {vr(P)}, {vr(P+1)}, {vr(P+2)}")
        a.e(f"v_or3_b32 {vr(X+1)}, {vr(P+3)}, {vr(P+4)}, {vr(P+5)}")
        a.e(f"v_or3_b32 {vr(X)}, {vr(X)}, {vr(P+6)}, {vr(P+7)}")
        a.e(f"v_or_b32 {vr(X)}, {vr(X)}, {vr(X+1)}")
        a.e(f"v_cmp_gt_i32 vcc, 0, {vr(X)}")
        a.e(f"s_cbranch_vccnz {reload_}")
        for u in range(2):
            for nt in range(2):
                a.e(f"{MFMA} {vr(V_ACC+16*nt,16)}, {vr(V_D1+16*q+8*nt+4*u,4)}, {vr(P+4*u,4)}, {vr(V_ACC+16*nt,16)}")
        a.e(f"s_bitset1_b32 {sr(S_DONE)}, {q}")
        a.e(f"s_cmp_eq_u32 {sr(S_DONE)}, 15")
        a.e("s_cbranch_scc1 L_pdone")
        a.label(cheap)
        for u in range(2):
            a.e(f"buffer_load_dword {vr(X+2+u)}, off, {sr(SRD_DBG,4)}, 0")
        a.e(f"s_branch {nxt}")
        a.label(reload_)
        for u in range(2):
            a.e(f"buffer_load_dwordx4 {vr(P+4*u,4)}, {vr(V_PO)}, {sr(SRD_WS,4)}, {sr(SP+q)} offen offset:{1024*u} sc1")
        a.label(nxt)
    a.e(f"s_sub_u32 {sr(S_CNT)}, {sr(S_CNT)}, 1")
    a.e("s_cbranch_scc0 L_ploop")
    a.label("L_pdone")
    a.vm = ["junk"] * 8
    stamp(a, 3, V_X + 4)
    a.e(f"v_add_u32 {vr(X)}, {sr(S_M0A)}, {vr(V_PO)}")
    a.e(f"s_lshl_b32 {sr(S_T0)}, {sr(S_W)}, 10")
    a.e(f"v_add_u32 {vr(X+1)}, {sr(S_T0)}, {vr(V_PO)}")
    a.e(f"v_add_u32 {vr(V_T)}, {4*20480}, {vr(X+1)}")
    a.nop(10)
    for k in range(8):
        a.lds(f"ds_write_b128 {vr(X)}, {vr(V_ACC+4*k,4)} offset:{k*1024}", "w")
    a.wait(lg0=True)
    a.e("s_barrier")
    R = V_D1
    for w2 in range(8):
        ad = X + 1 if w2 < 4 else V_T
        a.lds(f"ds_read_b128 {vr(R+4*w2,4)}, {vr(ad)} offset:{(w2&3)*20480}", ("r", w2))
    for w2 in range(0, 8, 2):
        a.wait(lg=[("r", w2 + 1)])
        for i in range(4):
            a.e(f"v_add_f32 {vr(R+4*w2+i)}, {vr(R+4*w2+i)}, {vr(R+4*w2+4+i)}")
    for i in range(4):
        a.e(f"v_add_f32 {vr(R+i)}, {vr(R+i)}, {vr(R+8+i)}")
    for i in range(4):
        a.e(f"v_add_f32 {vr(R+16+i)}, {vr(R+16+i)}, {vr(R+24+i)}")
    for i in range(4):
        a.e(f"v_add_f32 {vr(R+i)}, {vr(R+i)}, {vr(R+16+i)}")
    a.e(f"v_cvt_pk_bf16_f32 {vr(R+4)}, {vr(R)}, {vr(R+1)}")
    a.e(f"v_cvt_pk_bf16_f32 {vr(R+5)}, {vr(R+2)}, {vr(R+3)}")
    a.vmem(f"buffer_store_dwordx2 {vr(R+4,2)}, {vr(V_OO)}, {sr(SRD_B,4)}, {sr(S_OFFB)} offen", "o")
    stamp(a, 4, V_X + 4)
    a.wait(vm0=True)
    stamp(a, 5, V_X + 4)
    a.wait(vm0=True)
    a.e("s_endpgm")


def main():
    a = Asm()
    a.e(f"s_cmp_ge_u32 s2, {NWG}")
    a.e("s_cbranch_scc1 L_exit")
    a.e(f"s_load_dwordx16 {sr(S_PTR,16)}, s[0:1], 0")
    a.e("v_lshrrev_b32 v2, 6, v0")
    a.e("v_and_b32 v1, 63, v0")
    a.e(f"v_readfirstlane_b32 {sr(S_W)}, v2")
    a.e(f"s_cmp_ge_u32 s2, {NPROD}")
    a.e("s_cbranch_scc1 L_consumer")
    producer(a)
    consumer(a)
    a.label("L_exit")
    a.e("s_endpgm")
    out = HDR
    out += f"; @launch grid=({NWG},1,1) block=(512,1,1) lds=163840\n"
    out += f""".amdgcn_target "amdgcn-amd-amdhsa--gfx950"
.text
.globl {NAME}_kernel
.p2align 8
.type {NAME}_kernel,@function
{NAME}_kernel:
"""
    out += "\n".join(a.l) + "\n"
    out += f""".section .rodata,"a"
.p2align 6
.amdhsa_kernel {NAME}_kernel
  .amdhsa_next_free_vgpr 256
  .amdhsa_next_free_sgpr 96
  .amdhsa_accum_offset 256
  .amdhsa_group_segment_fixed_size 0
  .amdhsa_kernarg_size 64
  .amdhsa_user_sgpr_count 2
  .amdhsa_user_sgpr_kernarg_segment_ptr 1
  .amdhsa_system_sgpr_workgroup_id_x 1
.end_amdhsa_kernel
"""
    open(sys.argv[1], "w").write(out)


main()
```

```python
import sys

NAME = "standalone__gqa_block_cached__near_ridge"
HDR = open(f"cdna_kernels/{NAME}.s.ref").read().split("; Override launch")[0]

OPT = dict(stamps=0, dly=-1, nt=0, only=-1, pd=3, ca=3, cbar=1, pf=1, pfo=0, clr=0, code=1, pat=0)
ROLE = [0]
for a in sys.argv[2:]:
    k, v = a.split("=")
    OPT[k] = int(v)

NPROD = 64
NPF = 48
NCONS = 144
NWG = NPROD + NPF + NCONS
SPIN_MAX = 1 << 13


class Asm:
    def __init__(self):
        self.l = []
        self.vm = []
        self.lg = []
        self.uid = 0

    def e(self, s):
        self.l.append("    " + s)

    def c(self, s):
        self.l.append("    ; " + s)

    def label(self, s):
        self.l.append(s + ":")

    def newlabel(self, p):
        self.uid += 1
        return f"L_{p}_{self.uid}"

    def vmem(self, s, tag):
        self.e(s)
        self.vm.append(tag)
        assert len(self.vm) <= 63, "vmcnt overflow"

    def lds(self, s, tag):
        self.e(s)
        self.lg.append(tag)

    def _need(self, q, tags):
        idx = -1
        for i, t in enumerate(q):
            if t in tags:
                idx = i
        return idx

    def wait(self, vm=(), lg=(), lg0=False, vm0=False):
        parts = []
        if vm0:
            if self.vm:
                parts.append("vmcnt(0)")
            self.vm = []
        elif vm:
            i = self._need(self.vm, vm)
            if i >= 0:
                n = len(self.vm) - i - 1
                parts.append(f"vmcnt({n})")
                self.vm = self.vm[i + 1:]
        if lg0:
            if self.lg:
                parts.append("lgkmcnt(0)")
            self.lg = []
        elif lg:
            i = self._need(self.lg, lg)
            if i >= 0:
                n = len(self.lg) - i - 1
                n = min(n, 15)
                parts.append(f"lgkmcnt({n})")
                self.lg = self.lg[len(self.lg) - n:] if n else []
        if parts:
            self.e("s_waitcnt " + " ".join(parts))

    def nop(self, n):
        while n > 0:
            k = min(n, 16)
            self.e(f"s_nop {k-1}")
            n -= k


def NT(bit):
    return " nt" if (OPT["nt"] >> bit) & 1 else ""


def vr(a, n=1):
    return f"v{a}" if n == 1 else f"v[{a}:{a+n-1}]"


def sr(a, n=1):
    return f"s{a}" if n == 1 else f"s[{a}:{a+n-1}]"


S_PTR = 4
P_X, P_K, P_V, P_WQ, P_WO, P_OUT, P_DBG, P_WS = [S_PTR + 2 * i for i in range(8)]
SRD_A = 20
SRD_B = 24
SRD_C = 28
SRD_WS = 32
SRD_DBG = 36
S_W = 40
S_B = 41
S_H = 42
S_T0 = 43
S_T1 = 44
S_T2 = 45
S_T3 = 46
S_M0A = 47
S_M0B = 48
S_OFFA = 49
S_OFFB = 50
S_OFFP = 51
S_CNT = 52
S_DONE = 53
S_C1 = 54
S_C2 = 55
S_ROT = 56
S_TAB = 60
S_STAMP = 84
S_EX = 86


def srd(a, d, p, nbytes):
    a.e(f"s_mov_b32 {sr(d)}, {sr(p)}")
    a.e(f"s_mov_b32 {sr(d+1)}, {sr(p+1)}")
    a.e(f"s_mov_b32 {sr(d+2)}, {nbytes:#x}")
    a.e(f"s_mov_b32 {sr(d+3)}, 0x00020000")


def stamp(a, idx, vtmp):
    if OPT["dly"] == ROLE[0] * 10 + idx:
        a.e("s_memrealtime s[88:89]")
        a.e("s_waitcnt lgkmcnt(0)")
        a.lg = []
    if not OPT["stamps"]:
        return
    a.e(f"s_memrealtime {sr(S_STAMP,2)}")
    a.e("s_waitcnt lgkmcnt(0)")
    a.lg = []
    a.e(f"v_mov_b32 {vr(vtmp)}, {sr(S_STAMP)}")
    a.e(f"v_mov_b32 {vr(vtmp+1)}, {sr(S_STAMP+1)}")
    a.e(f"s_lshl_b32 {sr(S_STAMP)}, s2, 3")
    a.e(f"s_add_u32 {sr(S_STAMP)}, {sr(S_STAMP)}, {sr(S_W)}")
    a.e(f"s_lshl_b32 {sr(S_STAMP)}, {sr(S_STAMP)}, 7")
    a.e(f"s_add_u32 {sr(S_STAMP)}, {sr(S_STAMP)}, {0x400000 + idx*8:#x}")
    a.e(f"s_mov_b64 {sr(S_EX,2)}, exec")
    a.e("s_mov_b64 exec, 1")
    a.vmem(f"buffer_store_dwordx2 {vr(vtmp,2)}, off, {sr(SRD_WS,4)}, {sr(S_STAMP)}", "stamp")
    a.e(f"s_mov_b64 exec, {sr(S_EX,2)}")


def endpgm(a):
    if OPT["dly"] >= 0 and (OPT["dly"] // 10 == ROLE[0] or OPT["dly"] >= 98):
        lp = a.newlabel("dly")
        if OPT["only"] >= 0:
            a.e(f"s_cmp_gt_u32 s2, {OPT['only']}")
            a.e("s_cbranch_scc1 L_exit")
        a.e("s_add_u32 s88, s88, 4000")
        a.label(lp)
        a.e("s_sleep 4")
        a.e("s_memrealtime s[90:91]")
        a.e("s_waitcnt lgkmcnt(0)")
        a.e("s_sub_u32 s90, s90, s88")
        a.e("s_cmp_lt_i32 s90, 0")
        a.e(f"s_cbranch_scc1 {lp}")
    a.e("s_endpgm")


def rowtile_dma_offsets(a, vdst, vl, vt, stride, cnt=4):
    t0, t1, t2 = vt, vt + 1, vt + 2
    a.e(f"v_lshrrev_b32 {vr(t0)}, 3, {vr(vl)}")
    a.e(f"s_movk_i32 {sr(S_T0)}, {stride}")
    a.e(f"v_mul_lo_u32 {vr(t0)}, {vr(t0)}, {sr(S_T0)}")
    a.e(f"v_lshrrev_b32 {vr(t1)}, 4, {vr(vl)}")
    a.e(f"v_and_b32 {vr(t2)}, 7, {vr(vl)}")
    a.e(f"v_xor_b32 {vr(t1)}, {vr(t1)}, {vr(t2)}")
    a.e(f"v_lshlrev_b32 {vr(t1)}, 4, {vr(t1)}")
    a.e(f"v_xor_b32 {vr(t2)}, 64, {vr(t1)}")
    a.e(f"v_add_u32 {vr(vdst)}, {vr(t0)}, {vr(t1)}")
    a.e(f"v_add_u32 {vr(t2)}, {vr(t0)}, {vr(t2)}")
    d = 8 * stride - 1024
    a.e(f"v_add_u32 {vr(vdst+1)}, {d}, {vr(t2)}")
    if cnt > 2:
        a.e(f"v_add_u32 {vr(vdst+2)}, {2*d}, {vr(vdst)}")
        a.e(f"v_add_u32 {vr(vdst+3)}, {3*d}, {vr(t2)}")


def rowtile_read_addrs(a, vdst, vl, vt, sbase):
    t0, t1, t2 = vt, vt + 1, vt + 2
    a.e(f"v_and_b32 {vr(t0)}, 31, {vr(vl)}")
    a.e(f"v_bfe_u32 {vr(t1)}, {vr(vl)}, 1, 3")
    a.e(f"v_lshrrev_b32 {vr(t2)}, 5, {vr(vl)}")
    a.e(f"v_xor_b32 {vr(t1)}, {vr(t1)}, {vr(t2)}")
    a.e(f"v_lshlrev_b32 {vr(t1)}, 4, {vr(t1)}")
    a.e(f"v_lshlrev_b32 {vr(t0)}, 7, {vr(t0)}")
    a.e(f"v_add_u32 {vr(t0)}, {sr(sbase)}, {vr(t0)}")
    for s in range(4):
        if s:
            a.e(f"v_xor_b32 {vr(t2)}, {32*s}, {vr(t1)}")
            a.e(f"v_add_u32 {vr(vdst+s)}, {vr(t0)}, {vr(t2)}")
        else:
            a.e(f"v_add_u32 {vr(vdst)}, {vr(t0)}, {vr(t1)}")


MFMA = "v_mfma_f32_32x32x16_bf16"


def producer(a):
    V_L = 1
    V_T = 2
    V_DW = 8
    V_DX = 10
    V_DK = 14
    V_RA = 18
    V_RB = 22
    V_PO = 26
    V_CLR = 28
    V_ACC = 32
    V_FA = 96
    V_FB = 128
    V_KF = 136
    V_S = 168
    V_E = 184
    PD = OPT["pd"]
    NW = PD + 2
    NX = 4
    HREG = NW * 8192
    XBASE = 2 * HREG
    assert XBASE + 4 * NX * 4096 <= 163840
    S_XB = S_TAB + 2

    a.vm = []
    a.lg = []
    a.label("L_producer")
    ROLE[0] = 0
    a.e(f"s_and_b32 {sr(S_T0)}, s2, 7")
    a.e(f"s_lshl_b32 {sr(S_H)}, {sr(S_T0)}, 2")
    a.e(f"s_bfe_u32 {sr(S_T1)}, s2, 0x10003")
    a.e(f"s_lshl1_add_u32 {sr(S_H)}, {sr(S_T1)}, {sr(S_H)}")
    a.e(f"s_and_b32 {sr(S_T2)}, {sr(S_W)}, 1")
    a.e(f"s_add_u32 {sr(S_H)}, {sr(S_H)}, {sr(S_T2)}")
    a.e(f"s_lshr_b32 {sr(S_T3)}, {sr(S_W)}, 1")
    a.e(f"s_lshr_b32 {sr(S_B)}, s2, 4")
    a.e(f"s_lshl2_add_u32 {sr(S_B)}, {sr(S_B)}, {sr(S_T3)}")
    a.e(f"s_lshl_b32 {sr(S_OFFA)}, {sr(S_H)}, 8")
    a.e(f"s_lshl_b32 {sr(S_T0)}, {sr(S_T3)}, 16")
    a.e(f"s_add_u32 {sr(S_OFFA)}, {sr(S_OFFA)}, {sr(S_T0)}")
    a.e(f"s_mul_i32 {sr(S_M0A)}, {sr(S_T2)}, {HREG}")
    a.e(f"s_lshl_b32 {sr(S_T0)}, {sr(S_T3)}, 11")
    a.e(f"s_add_u32 {sr(S_M0A)}, {sr(S_M0A)}, {sr(S_T0)}")
    a.e(f"s_lshl1_add_u32 {sr(S_T0)}, {sr(S_B)}, {sr(S_T2)}")
    a.e(f"s_mul_i32 {sr(S_OFFB)}, {sr(S_T0)}, {16*1152}")
    a.e(f"s_mul_i32 {sr(S_XB)}, {sr(S_T3)}, {NX*4096}")
    a.e(f"s_add_u32 {sr(S_XB)}, {sr(S_XB)}, {XBASE}")
    a.e(f"s_lshl_b32 {sr(S_T0)}, {sr(S_T2)}, 11")
    a.e(f"s_add_u32 {sr(S_M0B)}, {sr(S_XB)}, {sr(S_T0)}")
    t0, t1, t2 = V_T, V_T + 1, V_T + 2
    a.e(f"v_lshrrev_b32 {vr(t0)}, 4, {vr(V_L)}")
    a.e(f"v_lshlrev_b32 {vr(t1)}, 2, {vr(t0)}")
    a.e(f"v_and_b32 {vr(t2)}, 15, {vr(V_L)}")
    a.e(f"v_xor_b32 {vr(t1)}, {vr(t1)}, {vr(t2)}")
    a.e(f"v_lshlrev_b32 {vr(t1)}, 4, {vr(t1)}")
    a.e(f"v_lshl_add_u32 {vr(V_DW)}, {vr(t0)}, 13, {vr(t1)}")
    a.e(f"v_add_u32 {vr(V_DW+1)}, {4*8192-1024}, {vr(V_DW)}")
    rowtile_dma_offsets(a, V_DX, V_L, V_T, 1152, 2)
    a.e("s_waitcnt lgkmcnt(0)")
    srd(a, SRD_A, P_WQ, 4718592)
    srd(a, SRD_B, P_X, 589824)

    def xload(c, i, tag):
        slot = c % NX
        pre = [f"s_add_u32 m0, {sr(S_M0B)}, {slot*4096}"]
        if c <= 8:
            pre.append(f"s_add_u32 {sr(S_T1)}, {sr(S_OFFB)}, {c*128}")
            ld = f"buffer_load_dwordx4 {vr(V_DX+i)}, {sr(SRD_B,4)}, {sr(S_T1)} offen offset:{1024*i} lds"
        else:
            pre.append("s_nop 0")
            ld = f"buffer_load_dwordx4 {vr(V_DK+i)}, {sr(SRD_C,4)}, {sr(S_TAB+(c-9))} offen offset:{1024*i} lds"
        return [(pre, ld, tag)]

    def unit(u):
        tag = ("u", u)
        out = []
        if u == 0:
            out += xload(0, 0, tag)
        if u <= 17:
            if u % 2 == 0:
                out += xload(u // 2, 1, tag)
            slot = u % NW
            pre = [f"s_add_u32 m0, {sr(S_M0A)}, {slot*8192}", f"s_add_u32 {sr(S_T0)}, {sr(S_OFFA)}, {u*32*8192}"]
            for i in range(2):
                out.append((pre if i == 0 else [], f"buffer_load_dwordx4 {vr(V_DW+i)}, {sr(SRD_A,4)}, {sr(S_T0)} offen offset:{1024*i} lds", tag))
            if u % 2 == 1:
                out += xload((u + 1) // 2, 0, tag)
        elif u == 18:
            out += xload(9, 1, tag) + xload(10, 0, tag) + xload(10, 1, tag)
        return out

    def emit(g):
        pre, ld, tag = g
        for s in pre:
            a.e(s)
        a.vmem(ld, tag)

    def clears():
        for u in range(2):
            a.vmem(f"buffer_store_dwordx4 {vr(V_CLR,4)}, {vr(V_PO)}, {sr(SRD_WS,4)}, {sr(S_OFFP)} offen offset:{1024*u} sc1", "clr")

    for g in unit(0):
        emit(g)
    stamp(a, 5, V_E)
    srd(a, SRD_WS, P_WS, 0x800000)
    a.e(f"s_lshl_b32 {sr(S_OFFP)}, {sr(S_B)}, 5")
    a.e(f"s_add_u32 {sr(S_OFFP)}, {sr(S_OFFP)}, {sr(S_H)}")
    a.e(f"s_lshl_b32 {sr(S_OFFP)}, {sr(S_OFFP)}, 11")
    a.e(f"v_lshlrev_b32 {vr(V_PO)}, 4, {vr(V_L)}")
    for i in range(4):
        a.e(f"v_mov_b32 {vr(V_CLR+i)}, -1")
    a.e("s_barrier")
    if OPT["clr"] == 0:
        clears()
    for g in unit(1):
        emit(g)
    if OPT["clr"] == 1:
        clears()
    srd(a, SRD_C, P_K, 2097152)
    srd(a, SRD_DBG, P_DBG, 256)
    a.e(f"s_lshl_b32 {sr(S_CNT)}, s2, 2")
    a.e(f"s_lshl_b32 {sr(S_TAB)}, {sr(S_B)}, 17")
    a.e(f"s_lshr_b32 {sr(S_T0)}, {sr(S_H)}, 1")
    a.e(f"s_lshl_b32 {sr(S_T0)}, {sr(S_T0)}, 13")
    a.e(f"s_add_u32 {sr(S_TAB)}, {sr(S_TAB)}, {sr(S_T0)}")
    a.e(f"s_lshl_b32 {sr(S_T0)}, {sr(S_T2)}, 12")
    a.e(f"s_add_u32 {sr(S_TAB)}, {sr(S_TAB)}, {sr(S_T0)}")
    a.e(f"s_add_u32 {sr(S_TAB+1)}, {sr(S_TAB)}, 128")
    a.e(f"s_mul_i32 {sr(S_T3)}, {sr(S_T2)}, {HREG}")
    rowtile_dma_offsets(a, V_DK, V_L, V_T, 256, 2)
    rowtile_read_addrs(a, V_RB, V_L, V_T, S_XB)
    t0, t1, t2, t3 = V_T, V_T + 1, V_T + 2, V_T + 3
    a.e(f"v_bfe_u32 {vr(t0)}, {vr(V_L)}, 2, 2")
    a.e(f"v_lshrrev_b32 {vr(t1)}, 5, {vr(V_L)}")
    a.e(f"v_lshlrev_b32 {vr(t1)}, 11, {vr(t1)}")
    a.e(f"v_lshl_add_u32 {vr(t1)}, {vr(t0)}, 8, {vr(t1)}")
    a.e(f"v_bfe_u32 {vr(t2)}, {vr(V_L)}, 4, 1")
    a.e(f"v_lshl_add_u32 {vr(t1)}, {vr(t2)}, 5, {vr(t1)}")
    a.e(f"v_and_b32 {vr(t2)}, 1, {vr(V_L)}")
    a.e(f"v_lshl_add_u32 {vr(t1)}, {vr(t2)}, 4, {vr(t1)}")
    a.e(f"v_bfe_u32 {vr(t2)}, {vr(V_L)}, 1, 1")
    a.e(f"v_lshl_add_u32 {vr(t1)}, {vr(t2)}, 3, {vr(t1)}")
    a.e(f"v_add_u32 {vr(t1)}, {sr(S_T3)}, {vr(t1)}")
    for t in range(4):
        a.e(f"v_xor_b32 {vr(t2)}, {t}, {vr(t0)}")
        a.e(f"v_lshl_add_u32 {vr(V_RA+t)}, {vr(t2)}, 6, {vr(t1)}")
    for u in range(2, PD):
        a.e("s_barrier")
        for g in unit(u):
            emit(g)
    if OPT["clr"] == 2:
        clears()
    stamp(a, 0, V_E)

    def reads(n):
        u, s2 = n >> 1, n & 1
        c, s = n >> 2, n & 3
        buf = n & 1
        r = []
        r.append((f"ds_read_b128 {vr(V_FB+4*buf,4)}, {vr(V_RB+s)} offset:{(c%NX)*4096}", ("B", n)))
        for t in range(4):
            for j2 in range(2):
                r.append((f"ds_read_b64_tr_b16 {vr(V_FA+16*buf+4*t+2*j2,2)}, {vr(V_RA+t)} offset:{(u%NW)*8192+s2*4096+j2*1024}", ("A", n, t)))
        return r

    def kreads():
        r = []
        for s8 in range(8):
            slot = (9 + (s8 >> 2)) % NX
            r.append((f"ds_read_b128 {vr(V_KF+4*s8,4)}, {vr(V_RB+(s8&3))} offset:{slot*4096}", ("K", s8)))
        return r

    a.wait(vm=[("u", 0)])
    a.e("s_barrier")
    stamp(a, 1, V_E)
    for ins, tag in reads(0):
        a.lds(ins, tag)
    for g in unit(PD):
        emit(g)
    pend = []
    flag_done = False
    for n in range(36):
        u, s2 = n >> 1, n & 1
        buf = n & 1
        nxt = reads(n + 1) if n + 1 < 36 else kreads()
        for t in range(4):
            a.wait(lg=[("B", n), ("A", n, t)])
            cin = "0" if n == 0 else vr(V_ACC + 16 * t, 16)
            a.e(f"{MFMA} {vr(V_ACC+16*t,16)}, {vr(V_FA+16*buf+4*t,4)}, {vr(V_FB+4*buf,4)}, {cin}")
            if s2 == 0 and t == 0:
                had_clr = "clr" in a.vm
                a.wait(vm=[("u", u + 1)])
                a.e("s_barrier")
                assert not pend
                pend = unit(u + 1 + PD)
                if not flag_done and "clr" not in a.vm:
                    flag_done = True
                    lab = a.newlabel("noflag")
                    a.e(f"s_cmp_lg_u32 {sr(S_W)}, 7")
                    a.e(f"s_cbranch_scc1 {lab}")
                    a.e("s_mov_b64 exec, 1")
                    a.e(f"v_mov_b32 {vr(V_T)}, 1")
                    a.e(f"buffer_store_dword {vr(V_T)}, off, {sr(SRD_DBG,4)}, {sr(S_CNT)} sc1")
                    a.e("s_mov_b64 exec, -1")
                    a.label(lab)
            for _ in range(3):
                if nxt:
                    ins, tag = nxt.pop(0)
                    a.lds(ins, tag)
            if pend and (s2, t) in ((0, 0), (0, 1), (0, 3)):
                emit(pend.pop(0))
    assert not pend and flag_done
    stamp(a, 2, V_E)
    a.nop(4)
    def cvt_tile(t):
        for i in range(8):
            b = V_ACC + 16 * t
            a.e(f"v_cvt_pk_bf16_f32 {vr(b+i)}, {vr(b+2*i)}, {vr(b+2*i+1)}")
    a.nop(4)
    cvt_tile(0)
    cvt_tile(1)
    for t in range(4):
        for u in range(2):
            s8 = 2 * t + u
            a.wait(lg=[("K", s8)])
            cin = "0" if s8 == 0 else vr(V_S, 16)
            a.e(f"{MFMA} {vr(V_S,16)}, {vr(V_KF+4*s8,4)}, {vr(V_ACC+16*t+4*u,4)}, {cin}")
        if t + 2 < 4:
            cvt_tile(t + 2)
    a.e(f"s_mov_b32 {sr(S_C1)}, 0x3e0293ee")
    a.e(f"s_mov_b32 {sr(S_C2)}, 0x7fff7fff")
    a.nop(14)
    S = V_S
    E = V_E
    a.e(f"v_max3_f32 {vr(E)}, {vr(S)}, {vr(S+1)}, {vr(S+2)}")
    a.e(f"v_max3_f32 {vr(E+1)}, {vr(S+3)}, {vr(S+4)}, {vr(S+5)}")
    a.e(f"v_max3_f32 {vr(E+2)}, {vr(S+6)}, {vr(S+7)}, {vr(S+8)}")
    a.e(f"v_max3_f32 {vr(E+3)}, {vr(S+9)}, {vr(S+10)}, {vr(S+11)}")
    a.e(f"v_max3_f32 {vr(E+4)}, {vr(S+12)}, {vr(S+13)}, {vr(S+14)}")
    a.e(f"v_max3_f32 {vr(E)}, {vr(E)}, {vr(E+1)}, {vr(S+15)}")
    a.e(f"v_max3_f32 {vr(E+2)}, {vr(E+2)}, {vr(E+3)}, {vr(E+4)}")
    a.e(f"v_max_f32 {vr(E)}, {vr(E)}, {vr(E+2)}")
    a.e(f"v_mov_b32 {vr(E+1)}, {vr(E)}")
    a.nop(2)
    a.e(f"v_permlane32_swap_b32 {vr(E)}, {vr(E+1)}")
    a.nop(1)
    a.e(f"v_max_f32 {vr(E)}, {vr(E)}, {vr(E+1)}")
    a.e(f"v_mul_f32 {vr(E)}, {sr(S_C1)}, {vr(E)}")
    for i in range(16):
        a.e(f"v_fma_f32 {vr(S+i)}, {vr(S+i)}, {sr(S_C1)}, -{vr(E)}")
    for i in range(16):
        a.e(f"v_exp_f32 {vr(S+i)}, {vr(S+i)}")
    a.nop(1)
    for i in range(8):
        a.e(f"v_add_f32 {vr(E+i)}, {vr(S+2*i)}, {vr(S+2*i+1)}")
    for i in range(4):
        a.e(f"v_add_f32 {vr(E+i)}, {vr(E+i)}, {vr(E+4+i)}")
    a.e(f"v_add_f32 {vr(E)}, {vr(E)}, {vr(E+2)}")
    a.e(f"v_add_f32 {vr(E+1)}, {vr(E+1)}, {vr(E+3)}")
    a.e(f"v_add_f32 {vr(E)}, {vr(E)}, {vr(E+1)}")
    a.e(f"v_mov_b32 {vr(E+1)}, {vr(E)}")
    a.nop(2)
    a.e(f"v_permlane32_swap_b32 {vr(E)}, {vr(E+1)}")
    a.nop(1)
    a.e(f"v_add_f32 {vr(E)}, {vr(E)}, {vr(E+1)}")
    a.e(f"v_rcp_f32 {vr(E)}, {vr(E)}")
    a.nop(1)
    for i in range(16):
        a.e(f"v_mul_f32 {vr(S+i)}, {vr(S+i)}, {vr(E)}")
    for i in range(8):
        a.e(f"v_cvt_pk_bf16_f32 {vr(E+4+i)}, {vr(S+2*i)}, {vr(S+2*i+1)}")
    for i in range(8):
        a.e(f"v_and_b32 {vr(E+4+i)}, {sr(S_C2)}, {vr(E+4+i)}")
    for u in range(2):
        a.vmem(f"buffer_store_dwordx4 {vr(E+4+4*u,4)}, {vr(V_PO)}, {sr(SRD_WS,4)}, {sr(S_OFFP)} offen offset:{1024*u} sc1", "p")
    stamp(a, 3, V_T)
    a.wait(vm0=True)
    stamp(a, 4, V_T)
    a.wait(vm0=True)
    endpgm(a)


def pf_groups():
    wq = lambda c: ("wq", c * 64 * 8192)
    x = lambda c: ("x", c * 128)
    k = lambda e, f: ("k", e * 131072 + f * 8192)
    v = lambda bl, i: ("v", bl * 131072 + i * 8192)
    wo = lambda hq, half, sl: ("wo", (hq * 128 + half * 64) * 1152 + sl * 128)
    def prod(c0, c1=9):
        g = []
        for c in range(c0, c1):
            g += [wq(c), x(c)]
        return g
    K = [k(e, f) for e in range(2) for f in range(2)]
    V1 = [v(b, 1) for b in range(8)]
    WO = lambda hq: [wo(hq, h, s) for h in range(2) for s in range(3)]
    o = OPT["pfo"]
    if o == 0:
        return prod(2) + K + V1 + WO(2) + WO(3)
    if o == 1:
        return prod(1) + K + V1 + WO(2) + WO(3)
    if o == 2:
        return prod(2) + K
    if o == 3:
        return WO(1) + V1 + WO(2) + WO(3)
    if o == 4:
        return prod(2) + K + WO(2) + WO(3)
    if o == 5:
        return prod(2, 5) + WO(1) + prod(5) + K + V1 + WO(2) + WO(3)
    if o == 6:
        return prod(3) + V1 + WO(2) + WO(3)
    raise


def prefetcher(a):
    V_L = 1
    VQ, VR, VN = 2, 3, 4
    a.vm = []
    a.lg = []
    a.label("L_pf")
    ROLE[0] = 2
    SB = dict(wq=S_TAB, x=S_TAB + 1, k=S_TAB + 2, v=S_TAB + 3, wo=S_TAB + 4)
    SRD = dict(wq=SRD_A, x=SRD_B, k=SRD_C, v=64 + 4, wo=72)
    PAT = dict(wq=VQ, x=VR, k=VN, v=VN, wo=VR)
    a.e(f"v_lshlrev_b32 {vr(VN)}, 7, {vr(V_L)}")
    if OPT["code"]:
        a.e("s_getpc_b64 s[76:77]")
        a.label("L_pc")
        a.e(f"s_sub_u32 s76, s76, L_pc-{NAME}_kernel")
        a.e("s_subb_u32 s77, s77, 0")
        a.e(f"s_mov_b32 s78, L_end-{NAME}_kernel")
        a.e("s_mov_b32 s79, 0x00020000")
        a.e(f"s_lshl_b32 {sr(S_T0)}, {sr(S_W)}, 13")
        a.vmem(f"buffer_load_dword v8, {vr(VN)}, s[76:79], {sr(S_T0)} offen", "c")
    a.e(f"s_and_b32 {sr(S_T0)}, s2, 7")
    a.e(f"s_lshl_b32 {sr(SB['wq'])}, {sr(S_W)}, 16")
    a.e(f"s_lshl_b32 {sr(S_T1)}, {sr(S_T0)}, 10")
    a.e(f"s_add_u32 {sr(SB['wq'])}, {sr(SB['wq'])}, {sr(S_T1)}")
    a.e(f"s_mul_i32 {sr(SB['x'])}, {sr(S_W)}, {64*1152}")
    a.e(f"v_lshrrev_b32 v5, 3, {vr(V_L)}")
    a.e(f"v_and_b32 v6, 7, {vr(V_L)}")
    a.e(f"v_lshlrev_b32 v6, 7, v6")
    a.e(f"v_lshl_add_u32 {vr(VQ)}, v5, 13, v6")
    a.e(f"s_movk_i32 {sr(S_T1)}, 1152")
    a.e(f"v_mul_lo_u32 {vr(VR)}, {vr(V_L)}, {sr(S_T1)}")
    a.e(f"s_lshl_b32 {sr(SB['k'])}, {sr(S_W)}, 18")
    a.e(f"s_lshl_b32 {sr(S_T1)}, {sr(S_T0)}, 14")
    a.e(f"s_add_u32 {sr(SB['k'])}, {sr(SB['k'])}, {sr(S_T1)}")
    a.e(f"s_and_b32 {sr(S_T1)}, {sr(S_T0)}, 1")
    a.e(f"s_lshl_b32 {sr(SB['v'])}, {sr(S_T1)}, 20")
    a.e(f"s_lshl_b32 {sr(S_T1)}, {sr(S_W)}, 14")
    a.e(f"s_add_u32 {sr(SB['v'])}, {sr(SB['v'])}, {sr(S_T1)}")
    a.e(f"s_mul_i32 {sr(SB['wo'])}, {sr(S_W)}, {512*1152}")
    a.e(f"s_lshr_b32 {sr(S_T1)}, {sr(S_T0)}, 1")
    a.e(f"s_lshl_b32 {sr(S_T1)}, {sr(S_T1)}, 8")
    a.e(f"s_add_u32 {sr(SB['wo'])}, {sr(SB['wo'])}, {sr(S_T1)}")
    a.e(f"s_lshr_b32 {sr(S_T2)}, s2, 3")
    a.e("s_waitcnt lgkmcnt(0)")
    srd(a, SRD["wq"], P_WQ, 4718592)
    srd(a, SRD["x"], P_X, 589824)
    srd(a, SRD["k"], P_K, 2097152)
    srd(a, SRD["v"], P_V, 2097152)
    srd(a, SRD["wo"], P_WO, 4718592)
    if OPT["stamps"]:
        srd(a, SRD_WS, P_WS, 0x800000)
    G = pf_groups() if OPT["pf"] else []
    per = NPF // 8
    for j in range(1, per):
        a.e(f"s_cmp_eq_u32 {sr(S_T2)}, {NPROD//8 + j}")
        a.e(f"s_cbranch_scc1 L_pf{j}")
    for j in range(per):
        a.label(f"L_pf{j}")
        a.vm = []
        mine = G[j::per]
        for r, (buf, c) in enumerate(mine):
            a.e(f"s_add_u32 {sr(S_T0)}, {sr(SB[buf])}, {c}")
            a.vmem(f"buffer_load_dword {vr(10+r)}, {vr(PAT[buf])}, {sr(SRD[buf],4)}, {sr(S_T0)} offen", "t")
            if r + 1 < len(mine):
                a.e("s_barrier")
        stamp(a, 0, 40)
        a.e("s_waitcnt vmcnt(0)")
        stamp(a, 1, 40)
        a.e("s_waitcnt vmcnt(0)")
        endpgm(a)


def consumer(a):
    V_L = 1
    V_T = 2
    V_DW = 8
    V_DV = 12
    V_RW = 16
    V_RV = 18
    V_PO = 22
    V_FL = 23
    V_FV = 24
    V_OO = 25
    V_X = 26
    V_ACC = 32
    V_D1 = 64
    V_P = 128
    V_VF = 160
    V_WF = 224
    CA = OPT["ca"]
    CBAR = OPT["cbar"]
    SW = S_TAB
    SV = S_TAB + 1
    SP = S_TAB + 2
    a.vm = []
    a.lg = []
    a.label("L_consumer")
    ROLE[0] = 1
    a.e(f"s_bfe_u32 {sr(S_T0)}, s2, 0x20001")
    a.e(f"s_mul_i32 {sr(S_T0)}, {sr(S_T0)}, 18")
    a.e(f"s_lshr_b32 {sr(S_T1)}, s2, 3")
    a.e(f"s_add_u32 {sr(S_T0)}, {sr(S_T0)}, {sr(S_T1)}")
    a.e(f"s_sub_u32 {sr(S_T0)}, {sr(S_T0)}, {(NPROD+NPF)//8}")
    a.e(f"s_lshr_b32 {sr(S_H)}, {sr(S_T0)}, 3")
    a.e(f"s_and_b32 {sr(S_B)}, {sr(S_T0)}, 7")
    a.e(f"s_and_b32 {sr(S_T1)}, s2, 1")
    a.e(f"s_lshl3_add_u32 {sr(S_B)}, {sr(S_T1)}, {sr(S_B)}")
    a.e(f"s_mul_i32 {sr(S_M0A)}, {sr(S_W)}, 20480")
    a.e(f"s_lshl_b32 {sr(SV)}, {sr(S_B)}, 17")
    a.e(f"s_lshl_b32 {sr(S_T1)}, {sr(S_W)}, 14")
    a.e(f"s_add_u32 {sr(SV)}, {sr(SV)}, {sr(S_T1)}")
    rowtile_dma_offsets(a, V_DV, V_L, V_T, 256)
    a.e("s_waitcnt lgkmcnt(0)")
    srd(a, SRD_C, P_V, 2097152)

    items = []
    for i in range(2):
        items += [("V", i, 0), ("V", i, 1)]
        for hq in range(2):
            for j in range(4):
                items.append(("W", i, hq, j))
    NI = len(items)
    NSLOT = 5
    assert CA + 1 <= NSLOT

    def p_load(q, u, tag):
        return ([], f"buffer_load_dwordx4 {vr(V_P+8*q+4*u,4)}, {vr(V_PO)}, {sr(SRD_WS,4)}, {sr(SP+q)} offen offset:{1024*u} sc1", tag)

    def dma(n):
        if n >= NI:
            return []
        it = items[n]
        slot = n % NSLOT
        g = []
        if it[0] == "V":
            pre = [f"s_add_u32 m0, {sr(S_M0A)}, {slot*4096}", f"s_add_u32 {sr(S_OFFA)}, {sr(SV)}, {it[1]*8192+it[2]*128}"]
            for k in range(4):
                g.append((pre if k == 0 else [], f"buffer_load_dwordx4 {vr(V_DV+k)}, {sr(SRD_C,4)}, {sr(S_OFFA)} offen offset:{1024*k} lds", ("it", n)))
        else:
            _, i, hq, j = it
            pre = [f"s_add_u32 m0, {sr(S_M0A)}, {slot*4096}", f"s_add_u32 {sr(S_OFFA)}, {sr(SW)}, {(i*256+hq*128+j*32)*1152}"]
            for k in range(4):
                g.append((pre if k == 0 else [], f"buffer_load_dwordx4 {vr(V_DW+k)}, {sr(SRD_A,4)}, {sr(S_OFFA)} offen offset:{1024*k} lds", ("it", n)))
        return g

    def emit(g):
        pre, ld, tag = g
        for s in pre:
            a.e(s)
        a.vmem(ld, tag)

    for g in dma(0):
        emit(g)
    stamp(a, 6, V_X)
    a.e("s_barrier")
    for g in dma(1):
        emit(g)
    t0, t1, t2 = V_T, V_T + 1, V_T + 2
    a.e(f"v_lshrrev_b32 {vr(t0)}, 3, {vr(V_L)}")
    a.e(f"s_movk_i32 {sr(S_T0)}, 1152")
    a.e(f"v_mul_lo_u32 {vr(t0)}, {vr(t0)}, {sr(S_T0)}")
    a.e(f"v_bfe_u32 {vr(t1)}, {vr(V_L)}, 4, 1")
    a.e(f"v_lshlrev_b32 {vr(t1)}, 2, {vr(t1)}")
    a.e(f"v_and_b32 {vr(t2)}, 7, {vr(V_L)}")
    a.e(f"v_xor_b32 {vr(t1)}, {vr(t1)}, {vr(t2)}")
    a.e(f"v_lshl_add_u32 {vr(V_DW)}, {vr(t1)}, 4, {vr(t0)}")
    for i in range(1, 4):
        a.e(f"v_add_u32 {vr(V_DW+i)}, {i*(8*1152-1024)}, {vr(V_DW)}")
    srd(a, SRD_A, P_WO, 4718592)
    a.e(f"s_mul_i32 {sr(SW)}, {sr(S_W)}, {512*1152}")
    a.e(f"s_lshl_b32 {sr(S_T1)}, {sr(S_H)}, 7")
    a.e(f"s_add_u32 {sr(SW)}, {sr(SW)}, {sr(S_T1)}")
    a.e(f"s_lshl_b32 {sr(S_T0)}, {sr(S_B)}, 16")
    a.e(f"s_lshl_b32 {sr(S_T1)}, {sr(S_W)}, 13")
    a.e(f"s_add_u32 {sr(SP)}, {sr(S_T0)}, {sr(S_T1)}")
    for q in range(1, 4):
        a.e(f"s_add_u32 {sr(SP+q)}, {sr(SP)}, {q*2048}")
    srd(a, SRD_WS, P_WS, 0x800000)
    srd(a, SRD_DBG, P_DBG, 256)
    srd(a, SRD_B, P_OUT, 589824)
    rowtile_read_addrs(a, V_RV, V_L, V_T, S_M0A)
    a.e(f"v_bfe_u32 {vr(t0)}, {vr(V_L)}, 2, 2")
    a.e(f"v_lshrrev_b32 {vr(t1)}, 5, {vr(V_L)}")
    a.e(f"v_lshlrev_b32 {vr(t1)}, 10, {vr(t1)}")
    a.e(f"v_lshl_add_u32 {vr(t1)}, {vr(t0)}, 7, {vr(t1)}")
    a.e(f"v_bfe_u32 {vr(t2)}, {vr(V_L)}, 4, 1")
    a.e(f"v_lshl_add_u32 {vr(t1)}, {vr(t2)}, 5, {vr(t1)}")
    a.e(f"v_and_b32 {vr(t2)}, 1, {vr(V_L)}")
    a.e(f"v_lshl_add_u32 {vr(t1)}, {vr(t2)}, 4, {vr(t1)}")
    a.e(f"v_bfe_u32 {vr(t2)}, {vr(V_L)}, 1, 1")
    a.e(f"v_lshl_add_u32 {vr(t1)}, {vr(t2)}, 3, {vr(t1)}")
    a.e(f"v_add_u32 {vr(t1)}, {sr(S_M0A)}, {vr(t1)}")
    a.e(f"v_bfe_u32 {vr(t2)}, {vr(V_L)}, 3, 1")
    a.e(f"v_lshl_add_u32 {vr(V_RW)}, {vr(t2)}, 6, {vr(t1)}")
    a.e(f"v_xor_b32 {vr(t2)}, 1, {vr(t2)}")
    a.e(f"v_lshl_add_u32 {vr(V_RW+1)}, {vr(t2)}, 6, {vr(t1)}")
    a.e(f"v_lshlrev_b32 {vr(V_PO)}, 4, {vr(V_L)}")
    a.e(f"v_and_b32 {vr(t0)}, 1, {vr(V_L)}")
    a.e(f"s_lshr_b32 {sr(S_T1)}, {sr(S_B)}, 2")
    a.e(f"s_lshl4_add_u32 {sr(S_T0)}, {sr(S_T1)}, {sr(S_W)}")
    a.e(f"s_lshl_b32 {sr(S_T0)}, {sr(S_T0)}, 2")
    a.e(f"v_lshl_add_u32 {vr(V_FL)}, {vr(t0)}, 5, {sr(S_T0)}")
    a.e(f"v_and_b32 {vr(t0)}, 31, {vr(V_L)}")
    a.e(f"s_movk_i32 {sr(S_T0)}, 1152")
    a.e(f"v_mul_lo_u32 {vr(t0)}, {vr(t0)}, {sr(S_T0)}")
    a.e(f"v_lshrrev_b32 {vr(t1)}, 5, {vr(V_L)}")
    a.e(f"v_lshl_add_u32 {vr(V_OO)}, {vr(t1)}, 4, {vr(t0)}")
    a.e(f"s_mul_i32 {sr(S_OFFB)}, {sr(S_B)}, 36864")
    a.e(f"s_lshl_b32 {sr(S_T0)}, {sr(S_H)}, 7")
    a.e(f"s_add_u32 {sr(S_OFFB)}, {sr(S_OFFB)}, {sr(S_T0)}")
    a.e(f"s_lshr_b32 {sr(S_T0)}, {sr(S_W)}, 1")
    a.e(f"s_lshl_b32 {sr(S_T0)}, {sr(S_T0)}, 5")
    a.e(f"s_add_u32 {sr(S_OFFB)}, {sr(S_OFFB)}, {sr(S_T0)}")
    a.e(f"s_and_b32 {sr(S_T0)}, {sr(S_W)}, 1")
    a.e(f"s_lshl_b32 {sr(S_T0)}, {sr(S_T0)}, 3")
    a.e(f"s_add_u32 {sr(S_OFFB)}, {sr(S_OFFB)}, {sr(S_T0)}")
    for n in range(2, CA):
        a.e("s_barrier")
        for g in dma(n):
            emit(g)
    stamp(a, 0, V_X)

    wcount = [0]
    wbuf = {}

    def reads(n):
        it = items[n]
        slot = n % NSLOT
        r = []
        if it[0] == "V":
            _, i, hf = it
            for s in range(4):
                r.append((f"ds_read_b128 {vr(V_VF+32*i+16*hf+4*s,4)}, {vr(V_RV+s)} offset:{slot*4096}", ("rd", n)))
        else:
            buf = wcount[0] & 1
            wcount[0] += 1
            wbuf[n] = buf
            for s in range(2):
                for nt in range(2):
                    for j2 in range(2):
                        r.append((f"ds_read_b64_tr_b16 {vr(V_WF+16*buf+8*s+4*nt+2*j2,2)}, {vr(V_RW+nt)} offset:{slot*4096+s*2048+j2*512}", ("rd", n)))
        return r

    PAT = OPT["pat"]
    a.wait(vm=[("it", 0)])
    stamp(a, 1, V_X)
    if CBAR:
        a.e("s_barrier")
    if CA >= 2:
        for g in dma(CA):
            emit(g)
    for ins, tag in reads(0):
        a.lds(ins, tag)
    p_issued = 0
    for n in range(NI):
        it = items[n]
        a.wait(lg=[("rd", n)])
        mf = []
        if it[0] == "W":
            _, i, hq, j = it
            buf = wbuf[n]
            for s in range(2):
                for nt in range(2):
                    ks = 2 * j + s
                    cin = "0" if ks == 0 else vr(V_ACC + 16 * nt, 16)
                    mf.append(f"{MFMA} {vr(V_ACC+16*nt,16)}, {vr(V_VF+32*i+4*ks,4)}, {vr(V_WF+16*buf+8*s+4*nt,4)}, {cin}")
        if mf:
            a.e(mf.pop(0))
        if mf:
            a.e(mf.pop(0))
        if n + 1 < NI:
            a.wait(vm=[("it", n + 1)])
            rd = reads(n + 1)
        else:
            rd = []
        m = n + 1 + CA
        if CBAR and m < NI and (n + 1) % CBAR == 0:
            a.e("s_barrier")
        pend = dma(m)
        if m == NI - 4:
            pend.append(([], f"buffer_load_dword {vr(V_FV)}, {vr(V_FL)}, {sr(SRD_DBG,4)}, 0 offen sc1", "flag"))
        if m >= NI + PAT or n == NI - 1:
            if p_issued == 0:
                a.wait(vm=["flag"])
                ok = a.newlabel("flagok")
                lp = a.newlabel("flagloop")
                a.e(f"v_cmp_eq_u32 vcc, 0, {vr(V_FV)}")
                a.e(f"s_cbranch_vccz {ok}")
                a.e(f"s_mov_b32 {sr(S_CNT)}, {SPIN_MAX}")
                a.label(lp)
                a.e(f"buffer_load_dword {vr(V_FV)}, {vr(V_FL)}, {sr(SRD_DBG,4)}, 0 offen sc1")
                a.e(f"s_sub_u32 {sr(S_CNT)}, {sr(S_CNT)}, 1")
                a.e(f"s_cbranch_scc1 {ok}")
                a.e("s_waitcnt vmcnt(0)")
                a.e(f"v_cmp_eq_u32 vcc, 0, {vr(V_FV)}")
                a.e(f"s_cbranch_vccnz {lp}")
                a.label(ok)
            k = 4 - p_issued if n == NI - 1 else min(2, 4 - p_issued)
            for q in range(p_issued, p_issued + k):
                pend += [p_load(q, 0, ("p", q)), p_load(q, 1, ("p", q))]
            p_issued += k
        for g in pend[:2]:
            emit(g)
        for ins, tag in rd[:4]:
            a.lds(ins, tag)
        if mf:
            a.e(mf.pop(0))
        for ins, tag in rd[4:]:
            a.lds(ins, tag)
        if mf:
            a.e(mf.pop(0))
        for g in pend[2:]:
            emit(g)
        if it[0] == "W" and it[3] == 3:
            q = 2 * it[1] + it[2]
            a.nop(12)
            for nt in range(2):
                for i8 in range(8):
                    b = V_ACC + 16 * nt
                    a.e(f"v_cvt_pk_bf16_f32 {vr(V_D1+16*q+8*nt+i8)}, {vr(b+2*i8)}, {vr(b+2*i8+1)}")
    stamp(a, 2, V_X)
    if OPT["stamps"]:
        a.wait(vm0=True)
        for q in range(4):
            for u in range(2):
                emit(p_load(q, u, ("p", q)))
    assert a.vm == [("p", q) for q in range(4) for _ in range(2)], a.vm
    for i in range(32):
        a.e(f"v_mov_b32 {vr(V_ACC+i)}, 0")
    a.e(f"s_mov_b32 {sr(S_DONE)}, 0")
    a.e(f"s_mov_b32 {sr(S_CNT)}, {SPIN_MAX}")
    a.label("L_ploop")
    X = V_X
    for q in range(4):
        cheap = a.newlabel("cheap")
        reload_ = a.newlabel("reload")
        nxt = a.newlabel("pn")
        P = V_P + 8 * q
        a.e("s_waitcnt vmcnt(6)")
        a.e(f"s_bitcmp1_b32 {sr(S_DONE)}, {q}")
        a.e(f"s_cbranch_scc1 {cheap}")
        a.e(f"v_or3_b32 {vr(X)}, {vr(P)}, {vr(P+1)}, {vr(P+2)}")
        a.e(f"v_or3_b32 {vr(X+1)}, {vr(P+3)}, {vr(P+4)}, {vr(P+5)}")
        a.e(f"v_or3_b32 {vr(X)}, {vr(X)}, {vr(P+6)}, {vr(P+7)}")
        a.e(f"v_or_b32 {vr(X)}, {vr(X)}, {vr(X+1)}")
        a.e(f"v_cmp_gt_i32 vcc, 0, {vr(X)}")
        a.e(f"s_cbranch_vccnz {reload_}")
        for u in range(2):
            for nt in range(2):
                a.e(f"{MFMA} {vr(V_ACC+16*nt,16)}, {vr(V_D1+16*q+8*nt+4*u,4)}, {vr(P+4*u,4)}, {vr(V_ACC+16*nt,16)}")
        a.e(f"s_bitset1_b32 {sr(S_DONE)}, {q}")
        a.e(f"s_cmp_eq_u32 {sr(S_DONE)}, 15")
        a.e("s_cbranch_scc1 L_pdone")
        a.label(cheap)
        for u in range(2):
            a.e(f"buffer_load_dword {vr(X+2+u)}, off, {sr(SRD_DBG,4)}, 0")
        a.e(f"s_branch {nxt}")
        a.label(reload_)
        for u in range(2):
            a.e(f"buffer_load_dwordx4 {vr(P+4*u,4)}, {vr(V_PO)}, {sr(SRD_WS,4)}, {sr(SP+q)} offen offset:{1024*u} sc1")
        a.label(nxt)
    a.e(f"s_sub_u32 {sr(S_CNT)}, {sr(S_CNT)}, 1")
    a.e("s_cbranch_scc0 L_ploop")
    a.label("L_pdone")
    a.vm = ["junk"] * 8
    stamp(a, 3, V_X + 4)
    a.e(f"v_add_u32 {vr(X)}, {sr(S_M0A)}, {vr(V_PO)}")
    a.e(f"s_lshl_b32 {sr(S_T0)}, {sr(S_W)}, 10")
    a.e(f"v_add_u32 {vr(X+1)}, {sr(S_T0)}, {vr(V_PO)}")
    a.e(f"v_add_u32 {vr(V_T)}, {4*20480}, {vr(X+1)}")
    a.nop(10)
    for k in range(8):
        a.lds(f"ds_write_b128 {vr(X)}, {vr(V_ACC+4*k,4)} offset:{k*1024}", "w")
    a.wait(lg0=True)
    a.e("s_barrier")
    R = V_D1
    for w2 in range(8):
        ad = X + 1 if w2 < 4 else V_T
        a.lds(f"ds_read_b128 {vr(R+4*w2,4)}, {vr(ad)} offset:{(w2&3)*20480}", ("r", w2))
    for w2 in range(0, 8, 2):
        a.wait(lg=[("r", w2 + 1)])
        for i in range(4):
            a.e(f"v_add_f32 {vr(R+4*w2+i)}, {vr(R+4*w2+i)}, {vr(R+4*w2+4+i)}")
    for i in range(4):
        a.e(f"v_add_f32 {vr(R+i)}, {vr(R+i)}, {vr(R+8+i)}")
    for i in range(4):
        a.e(f"v_add_f32 {vr(R+16+i)}, {vr(R+16+i)}, {vr(R+24+i)}")
    for i in range(4):
        a.e(f"v_add_f32 {vr(R+i)}, {vr(R+i)}, {vr(R+16+i)}")
    a.e(f"v_cvt_pk_bf16_f32 {vr(R+4)}, {vr(R)}, {vr(R+1)}")
    a.e(f"v_cvt_pk_bf16_f32 {vr(R+5)}, {vr(R+2)}, {vr(R+3)}")
    a.vmem(f"buffer_store_dwordx2 {vr(R+4,2)}, {vr(V_OO)}, {sr(SRD_B,4)}, {sr(S_OFFB)} offen", "o")
    stamp(a, 4, V_X + 4)
    a.wait(vm0=True)
    stamp(a, 5, V_X + 4)
    a.wait(vm0=True)
    endpgm(a)


def main():
    a = Asm()
    a.e(f"s_cmp_ge_u32 s2, {NWG}")
    a.e("s_cbranch_scc1 L_exit")
    if OPT["dly"] == 99:
        a.e("s_memrealtime s[88:89]")
    a.e(f"s_load_dwordx16 {sr(S_PTR,16)}, s[0:1], 0")
    a.e("v_lshrrev_b32 v2, 6, v0")
    a.e("v_and_b32 v1, 63, v0")
    a.e(f"v_readfirstlane_b32 {sr(S_W)}, v2")
    if OPT["stamps"]:
        a.e("s_waitcnt lgkmcnt(0)")
        srd(a, SRD_WS, P_WS, 0x800000)
        ROLE[0] = 3
        stamp(a, 7, 40)
        a.vm = []
        a.e("s_waitcnt vmcnt(0)")
    a.e(f"s_cmp_ge_u32 s2, {NPROD+NPF}")
    a.e("s_cbranch_scc1 L_consumer")
    a.e(f"s_cmp_lt_u32 s2, {NPROD}")
    a.e("s_cbranch_scc1 L_producer")
    prefetcher(a)
    producer(a)
    consumer(a)
    a.label("L_exit")
    a.e("s_endpgm")
    a.label("L_end")
    out = HDR
    out += f"; @launch grid=({NWG},1,1) block=(512,1,1) lds=163840\n"
    out += f""".amdgcn_target "amdgcn-amd-amdhsa--gfx950"
.text
.globl {NAME}_kernel
.p2align 8
.type {NAME}_kernel,@function
{NAME}_kernel:
"""
    out += "\n".join(a.l) + "\n"
    out += f""".section .rodata,"a"
.p2align 6
.amdhsa_kernel {NAME}_kernel
  .amdhsa_next_free_vgpr 256
  .amdhsa_next_free_sgpr 96
  .amdhsa_accum_offset 256
  .amdhsa_group_segment_fixed_size 0
  .amdhsa_kernarg_size 64
  .amdhsa_user_sgpr_count 2
  .amdhsa_user_sgpr_kernarg_segment_ptr 1
  .amdhsa_system_sgpr_workgroup_id_x 1
.end_amdhsa_kernel
"""
    open(sys.argv[1], "w").write(out)


main()
```

```python
import sys

NAME = "standalone__gqa_block_cached__near_ridge"
HDR = open(f"cdna_kernels/{NAME}.s.ref").read().split("; Override launch")[0]

OPT = dict(stamps=0, depth=14, la=5, rot=1, krot=1, pp=64, pc=84, code=1, fin=999, split8=1, ns=8,
           kpos=4, hwid=0, mrg=0, prio=0, fb=3, hb=5)
for a_ in sys.argv[2:]:
    k_, v_ = a_.split("=")
    assert k_ in OPT, k_
    OPT[k_] = int(v_)

NWG = 256
ND1 = 192
NFIN = 144
SPIN_MAX = 1 << 13
MB = 0x800000
WS_SIZE = 0x1000000
TOK = 0x1ff000
MFMA = "v_mfma_f32_32x32x16_bf16"
UID = [0]


class Asm:
    def __init__(self):
        self.l = []
        self.vm = []
        self.lg = []
        self.n = 0

    def e(self, s):
        self.l.append("    " + s)
        self.n += 1

    def label(self, s):
        self.l.append(s + ":")

    def newlabel(self, p):
        UID[0] += 1
        return f"L_{p}_{UID[0]}"

    def vmem(self, s, tag):
        self.e(s)
        self.vm.append(tag)
        assert len(self.vm) <= 63, "vmcnt overflow"

    def lds(self, s, tag):
        self.e(s)
        self.lg.append(tag)

    def _need(self, q, tags):
        idx = -1
        for i, t in enumerate(q):
            if t in tags:
                idx = i
        return idx

    def wait(self, vm=(), lg=(), lg0=False, vm0=False):
        parts = []
        if vm0:
            if self.vm:
                parts.append("vmcnt(0)")
            self.vm = []
        elif vm:
            i = self._need(self.vm, vm)
            if i >= 0:
                parts.append(f"vmcnt({len(self.vm) - i - 1})")
                self.vm = self.vm[i + 1:]
        if lg0:
            if self.lg:
                parts.append("lgkmcnt(0)")
            self.lg = []
        elif lg:
            i = self._need(self.lg, lg)
            if i >= 0:
                n = min(len(self.lg) - i - 1, 15)
                parts.append(f"lgkmcnt({n})")
                self.lg = self.lg[len(self.lg) - n:] if n else []
        if parts:
            self.e("s_waitcnt " + " ".join(parts))

    def nop(self, n):
        while n > 0:
            k = min(n, 16)
            self.e(f"s_nop {k-1}")
            self.n += k - 1
            n -= k

    def gap(self, since, need):
        self.nop(need - (self.n - since))


def vr(a, n=1):
    return f"v{a}" if n == 1 else f"v[{a}:{a+n-1}]"


def sr(a, n=1):
    return f"s{a}" if n == 1 else f"s[{a}:{a+n-1}]"


S_PTR = 4
P_X, P_K, P_V, P_WQ, P_WO, P_OUT, P_DBG, P_WS = [S_PTR + 2 * i for i in range(8)]
SRD_WQ, SRD_X, SRD_K, SRD_V, SRD_WO, SRD_WS, SRD_DBG, SRD_OUT = [20 + 4 * i for i in range(8)]
S_W, S_X, S_HL, S_BP, S_T0, S_T1, S_T2, S_T3, S_SO, S_M0, S_CNT, S_DONE = range(52, 64)
S_TAB = 64
S_C1, S_C2 = 100, 101


def srd(a, d, p, nbytes):
    a.e(f"s_mov_b32 {sr(d)}, {sr(p)}")
    a.e(f"s_mov_b32 {sr(d+1)}, {sr(p+1)}")
    if nbytes is not None:
        a.e(f"s_mov_b32 {sr(d+2)}, {nbytes:#x}")
    a.e(f"s_mov_b32 {sr(d+3)}, 0x00020000")


def stamp(a, idx):
    if OPT["stamps"]:
        a.e(f"s_memrealtime s[{80+2*idx}:{81+2*idx}]")
        a.n -= 1


def endpgm(a):
    if OPT["stamps"]:
        a.e("s_branch L_stampout")
    else:
        a.e("s_endpgm")


def stamp_out(a):
    a.label("L_stampout")
    a.e("s_waitcnt vmcnt(0) lgkmcnt(0)")
    a.e("s_mov_b64 exec, -1")
    a.e("v_mov_b32 v2, 0")
    for i in range(10):
        a.e(f"v_writelane_b32 v2, s{80+2*i}, {i}")
    a.e("v_lshlrev_b32 v3, 2, v1")
    a.e("s_lshl_b32 s80, s2, 3")
    a.e(f"s_add_u32 s80, s80, {sr(S_W)}")
    a.e("s_lshl_b32 s80, s80, 6")
    a.e("s_add_u32 s80, s80, 0x400000")
    a.e("s_mov_b64 exec, 0xffff")
    a.e(f"buffer_store_dword v2, v3, {sr(SRD_WS,4)}, s80 offen")
    if OPT["hwid"]:
        a.e("s_endpgm")
    a.e("s_endpgm")


def make_tags(a, tok, d, tmp, shl):
    a.e(f"v_and_b32 {vr(d)}, 0xffff7777, {vr(tok)}")
    a.e(f"v_or_b32 {vr(d)}, 0x4444, {vr(d)}")
    a.e(f"v_and_b32 {vr(tmp)}, 3, v1")
    a.e(f"v_lshlrev_b32 {vr(tmp)}, 2, {vr(tmp)}")
    a.e(f"v_lshrrev_b32 {vr(d)}, {vr(tmp)}, {vr(d)}")
    for i in (3, 2, 1, 0):
        if shl - i:
            a.e(f"v_lshlrev_b32 {vr(d+i)}, {shl-i}, {vr(d)}")
        a.e(f"v_and_b32 {vr(d+i)}, {0x00010001 << shl:#x}, {vr(d+i)}")


def rowtile_dma_offsets(a, vdst, vt, stride):
    t0, t1, t2 = vt, vt + 1, vt + 2
    a.e(f"v_lshrrev_b32 {vr(t0)}, 3, v1")
    a.e(f"v_mul_u32_u24 {vr(t0)}, {stride}, {vr(t0)}")
    a.e(f"v_lshrrev_b32 {vr(t1)}, 4, v1")
    a.e(f"v_and_b32 {vr(t2)}, 7, v1")
    a.e(f"v_xor_b32 {vr(t1)}, {vr(t1)}, {vr(t2)}")
    a.e(f"v_lshl_add_u32 {vr(vdst)}, {vr(t1)}, 4, {vr(t0)}")
    a.e(f"v_xor_b32 {vr(t1)}, 4, {vr(t1)}")
    a.e(f"v_lshl_add_u32 {vr(t2)}, {vr(t1)}, 4, {vr(t0)}")
    a.e(f"v_add_u32 {vr(vdst+1)}, {8*stride-1024}, {vr(t2)}")


def build_stream():
    st, steps = [], []
    for c in range(9):
        if c == OPT["kpos"]:
            st += [("K", 0), ("K", 1)]
        st += [("X", c), ("W", c, 0)]
        if c == 8 and OPT["split8"]:
            steps.append(st[-1])
        st += [("W", c, 1)]
        steps.append(st[-1])
    bs = len(steps)
    for hq in range(4):
        if hq % 2 == 0:
            st += [("V", hq // 2, bb) for bb in range(4)]
        st += [("F", hq, 0)]
        if hq and not (OPT["mrg"] >> (2 * hq)) & 1:
            steps.append(st[-1])
        st += [("F", hq, 1)]
        if not (OPT["mrg"] >> (2 * hq + 1)) & 1:
            steps.append(st[-1])
        st += [("H", hq)]
        steps.append(st[-1])
    slot, ring = {}, 0
    for b in st:
        if b[0] == "K":
            slot[b] = 18 + b[1]
        elif b[0] == "V" and b[1] == 0:
            slot[b] = 14 + b[2]
        else:
            slot[b] = ring % 14
            ring += 1
    assert [slot[("V", 1, bb)] - slot[("V", 1, 0)] for bb in range(4)] == [0, 1, 2, 3]
    step_of, k = {}, 0
    for b in st:
        step_of[b] = k
        if b == steps[k]:
            k += 1
    return st, steps, slot, step_of, bs


STREAM, STEPS, SLOT, STEP_OF, BS = build_stream()
KB = 18 * 8192
FREE_AT = {}
NBAR = [0]


class AG:
    def __init__(self, a, regs, bias=0):
        self.a, self.regs, self.bias = a, regs, bias

    def off(self, blockbase, inner):
        if not (self.bias <= blockbase and blockbase + 8192 <= self.bias + 65536):
            nb = min(blockbase // 65536 * 65536, 163840 - 65536)
            d = nb - self.bias
            for r in self.regs:
                if d > 0:
                    self.a.e(f"v_add_u32 {vr(r)}, {d}, {vr(r)}")
                else:
                    self.a.e(f"v_subrev_u32 {vr(r)}, {-d}, {vr(r)}")
            self.bias = nb
        return blockbase + inner - self.bias


def mfma_wave(a):
    V_T = 2
    V_RV, V_RW, V_RH, V_PO = 8, 12, 14, 15
    V_RING, NB = 16, 8
    V_V = 48
    V_P = 80
    V_D = 112
    V_ACC = 208
    V_RQ, V_RX, V_RK, V_EX = V_D, V_D + 2, V_D + 6, V_D + 10
    V_FV, V_FL = 6, 7
    SP, SMB = S_TAB, S_TAB + 2
    LA = OPT["la"]
    t0, t1, t2, t3 = V_T, V_T + 1, V_T + 2, V_T + 3
    a.label("L_mfma")
    if OPT["prio"]:
        a.e(f"s_setprio {OPT['prio']}")
    a.e(f"v_lshlrev_b32 {vr(V_PO)}, 4, v1")
    if OPT["code"]:
        a.e("s_getpc_b64 s[76:77]")
        a.label("L_pc")
        a.e(f"s_sub_u32 s76, s76, L_pc-{NAME}_kernel")
        a.e("s_subb_u32 s77, s77, 0")
        a.e(f"s_mov_b32 s78, L_end-{NAME}_kernel")
        a.e("s_mov_b32 s79, 0x00020000")
        a.e(f"s_lshl_b32 {sr(S_T0)}, {sr(S_W)}, 13")
        a.e(f"v_lshlrev_b32 {vr(t0)}, 7, v1")
        a.vmem(f"buffer_load_dword {vr(V_FV)}, {vr(t0)}, s[76:79], {sr(S_T0)} offen", "c")
    a.e(f"s_lshr_b32 {sr(S_T0)}, {sr(S_W)}, 1")
    a.e(f"s_and_b32 {sr(S_T2)}, {sr(S_W)}, 1")
    a.e(f"s_lshl2_add_u32 {sr(S_T3)}, {sr(S_HL)}, {sr(S_W)}")
    a.e(f"s_mul_i32 {sr(SMB)}, {sr(S_T3)}, 18")
    a.e(f"s_mul_i32 {sr(S_SO)}, {sr(S_BP)}, 3")
    a.e(f"s_add_u32 {sr(SMB)}, {sr(SMB)}, {sr(S_SO)}")
    a.e(f"s_and_b32 {sr(S_SO)}, {sr(S_BP)}, 1")
    a.e(f"s_lshl_b32 {sr(S_M0)}, {sr(S_SO)}, 1")
    a.e(f"s_sub_u32 {sr(SMB+2)}, {sr(SMB)}, {sr(S_M0)}")
    a.e(f"s_add_u32 {sr(SMB+2)}, {sr(SMB+2)}, 2")
    a.e(f"s_add_u32 {sr(SMB)}, {sr(SMB)}, {sr(S_SO)}")
    a.e(f"s_lshl_b32 {sr(S_M0)}, {sr(S_X)}, 11")
    a.e(f"s_add_u32 {sr(S_M0)}, {sr(S_M0)}, {MB:#x}")
    for t in (0, 2):
        a.e(f"s_lshl_b32 {sr(SMB+t)}, {sr(SMB+t)}, 14")
        a.e(f"s_add_u32 {sr(SMB+t)}, {sr(SMB+t)}, {sr(S_M0)}")
    a.e(f"s_add_u32 {sr(SMB+1)}, {sr(SMB)}, 16384")
    a.e("s_waitcnt lgkmcnt(0)")
    srd(a, SRD_WS, P_WS, WS_SIZE)
    a.e(f"s_mov_b32 {sr(SMB+3)}, {TOK:#x}")
    a.vmem(f"buffer_load_dword {vr(V_FL)}, off, {sr(SRD_WS,4)}, {sr(SMB+3)}", "tok")
    a.e(f"s_lshl3_add_u32 {sr(SP)}, {sr(S_T3)}, {sr(S_X)}")
    a.e(f"s_lshl_b32 {sr(SP)}, {sr(SP)}, 13")
    if OPT["krot"]:
        a.e(f"s_add_u32 {sr(S_SO)}, {sr(S_HL)}, {sr(S_BP)}")
        a.e(f"s_and_b32 {sr(S_SO)}, {sr(S_SO)}, 1")
        a.e(f"s_lshl_b32 {sr(S_SO)}, {sr(S_SO)}, 12")
        a.e(f"s_add_u32 {sr(SP)}, {sr(SP)}, {sr(S_SO)}")
    a.e(f"s_xor_b32 {sr(SP+1)}, {sr(SP)}, 4096")
    a.e(f"v_and_b32 {vr(t0)}, 31, v1")
    a.e(f"v_bfe_u32 {vr(t1)}, v1, 1, 3")
    a.e(f"v_lshrrev_b32 {vr(t2)}, 5, v1")
    a.e(f"v_xor_b32 {vr(t1)}, {vr(t1)}, {vr(t2)}")
    a.e(f"v_lshlrev_b32 {vr(t1)}, 4, {vr(t1)}")
    a.e(f"v_lshl_add_u32 {vr(t0)}, {vr(t0)}, 7, {vr(t1)}")
    a.e(f"s_lshl_b32 {sr(S_T0)}, {sr(S_T0)}, 12")
    a.e(f"s_lshl_b32 {sr(S_T1)}, {sr(S_W)}, 12")
    a.e(f"s_add_u32 {sr(S_T1)}, {sr(S_T1)}, {KB}")
    a.e(f"s_lshl_b32 {sr(S_SO)}, {sr(S_W)}, 13")
    a.e(f"s_add_u32 {sr(S_SO)}, {sr(S_SO)}, 65536")
    for s in range(4):
        a.e(f"v_xor_b32 {vr(t1)}, {32*s}, {vr(t0)}")
        a.e(f"v_add_u32 {vr(V_RX+s)}, {sr(S_T0)}, {vr(t1)}")
        a.e(f"v_add_u32 {vr(V_RK+s)}, {sr(S_T1)}, {vr(t1)}")
        a.e(f"v_add_u32 {vr(V_RV+s)}, {sr(S_SO)}, {vr(t1)}")
    a.e(f"v_add_u32 {vr(V_EX)}, {sr(S_T1)}, {vr(V_PO)}")
    a.e(f"v_bfe_u32 {vr(t0)}, v1, 2, 2")
    a.e(f"v_lshl_add_u32 {vr(t2)}, {vr(t2)}, 3, {vr(t0)}")
    a.e(f"v_bfe_u32 {vr(t1)}, v1, 4, 1")
    a.e(f"v_lshlrev_b32 {vr(t1)}, 5, {vr(t1)}")
    a.e(f"v_and_b32 {vr(t3)}, 1, v1")
    a.e(f"v_lshl_add_u32 {vr(t1)}, {vr(t3)}, 4, {vr(t1)}")
    a.e(f"v_bfe_u32 {vr(t3)}, v1, 1, 1")
    a.e(f"v_lshl_add_u32 {vr(t1)}, {vr(t3)}, 3, {vr(t1)}")
    a.e(f"v_lshl_add_u32 {vr(V_RH)}, {vr(t2)}, 6, {vr(t1)}")
    a.e(f"v_lshl_add_u32 {vr(V_RW)}, {vr(t2)}, 7, {vr(t1)}")
    a.e(f"v_bfe_u32 {vr(t3)}, v1, 3, 1")
    a.e(f"v_lshl_add_u32 {vr(V_RW)}, {vr(t3)}, 6, {vr(V_RW)}")
    a.e(f"v_xor_b32 {vr(V_RW+1)}, 64, {vr(V_RW)}")
    a.e(f"v_lshl_add_u32 {vr(t1)}, {vr(t2)}, 8, {vr(t1)}")
    a.e(f"s_lshl_b32 {sr(S_T2)}, {sr(S_T2)}, 1")
    a.e(f"v_xor_b32 {vr(t3)}, {sr(S_T2)}, {vr(t0)}")
    a.e(f"v_lshl_add_u32 {vr(V_RQ)}, {vr(t3)}, 6, {vr(t1)}")
    a.e(f"v_xor_b32 {vr(V_RQ+1)}, 64, {vr(V_RQ)}")
    a.e(f"s_mov_b32 {sr(S_C1)}, 0xfffefffe")

    gX, gQ = AG(a, [V_RX + s for s in range(4)]), AG(a, [V_RQ, V_RQ + 1])
    gV, gW, gH = AG(a, [V_RV + s for s in range(4)], 65536), AG(a, [V_RW, V_RW + 1]), AG(a, [V_RH])
    ACC = lambda t: V_ACC + 16 * t

    remaining = {}
    cur = [-1]
    last_mf = {}

    def barrier(k):
        assert k == cur[0] + 1
        if k == OPT["fb"]:
            a.wait(vm0=True)
        a.e("s_barrier")
        cur[0] = k
        busy = set(t[0] for t in a.lg)
        for b, r in remaining.items():
            if r == 0 and b not in busy and b not in FREE_AT:
                FREE_AT[b] = k
        if OPT["stamps"] == 2:
            if k in (0, 2, 4, 6, 8):
                stamp(a, k // 2)
        elif OPT["stamps"] == 3:
            if k in (BS, BS + 2, BS + 5, BS + 8, BS + 10):
                stamp(a, (BS, BS + 2, BS + 5, BS + 8, BS + 10).index(k))
        else:
            if k == 0:
                stamp(a, 0)
            if k == BS - 1:
                stamp(a, 1)
        if k == OPT["fb"]:
            a.e(f"v_add_u32 {vr(V_FL)}, 0x11111111, {vr(V_FL)}")
            make_tags(a, V_FL, V_T, V_FV, 15)

    def run(ops, side):
        rp = [0]

        def issue(upto):
            while rp[0] <= upto and rp[0] < len(ops):
                op = ops[rp[0]]
                for (ins, dst, grp, reg, blks, base, inner) in op["reads"]:
                    while cur[0] < max(STEP_OF[b] for b in blks):
                        barrier(cur[0] + 1)
                    off = grp.off(base, inner) if grp else inner
                    a.lds(f"{ins} {dst}, {vr(reg)} offset:{off}", (blks, rp[0], dst))
                    remaining[blks] -= 1
                rp[0] += 1
        issue(LA - 1)
        for i, op in enumerate(ops):
            for f in side.get((i, 0), []):
                f()
            a.wait(lg=[t for t in a.lg if t[1] <= i and t[2] not in op.get("lazy", ())])
            cin = "0" if op["first"] else vr(ACC(op["acc"]), 16)
            a.e(f"{MFMA} {vr(ACC(op['acc']),16)}, {op['A']}, {op['B']}, {cin}")
            last_mf[op["acc"]] = a.n
            issue(i + LA)
            for f in side.get((i, 1), []):
                f()

    def count(ops):
        for op in ops:
            for r in op["reads"]:
                remaining[r[4]] = remaining.get(r[4], 0) + 1

    def tr(i, grp, reg, blk, inner, dj):
        b = V_RING + 4 * (i % NB)
        return [("ds_read_b64_tr_b16", vr(b + 2 * j2, 2), grp, reg, (blk,), SLOT[blk] * 8192, inner + dj * j2) for j2 in range(2)]

    order = [(n, tt) for n in range(34) for tt in range(2)] + [(34, 0), (35, 0), (34, 1), (35, 1)]
    qops = []
    KBL = (("K", 0), ("K", 1))
    k0 = 4 * (OPT["kpos"] + 1)
    for i, (n, tt) in enumerate(order):
        c, s = n >> 2, n & 3
        rd = []
        xf = vr(V_V + 4 * (n % 4), 4)
        if tt == 0:
            rd.append(("ds_read_b128", xf, gX, V_RX + s, (("X", c),), SLOT[("X", c)] * 8192, 0))
        rd += tr(i, gQ, V_RQ + tt, ("W", c, s >> 1), (s & 1) * 4096, 1024)
        if tt == 1 and k0 <= n < k0 + 4:
            rd.append(("ds_read_b128", vr(V_V + 16 + 4 * (n - k0), 4), None, V_RK + n - k0, KBL, 0, 0))
        qops.append(dict(acc=tt, A=vr(V_RING + 4 * (i % NB), 4), B=xf, first=(n == 0), reads=rd))
    dops = []
    for hq in range(4):
        VB = tuple(("V", hq // 2, bb) for bb in range(4))
        for f in range(2):
            for k4 in range(4):
                ks = 4 * f + k4
                for nt in range(2):
                    i = len(dops)
                    rd = []
                    if hq % 2 == 0 and nt == 0:
                        rd.append(("ds_read_b128", vr(V_V + 4 * ks, 4), gV, V_RV + k4, VB, SLOT[VB[0]] * 8192, f * 4096))
                    rd += tr(i, gW, V_RW + nt, ("F", hq, f), k4 * 2048, 512)
                    dops.append(dict(acc=nt, A=vr(V_V + 4 * ks, 4), B=vr(V_RING + 4 * (i % NB), 4), first=(ks == 0), reads=rd))
        for ks in range(8):
            i = len(dops)
            dops.append(dict(acc=2, A=vr(V_V + 4 * ks, 4), B=vr(V_RING + 4 * (i % NB), 4), first=(ks == 0),
                             reads=tr(i, gH, V_RH, ("H", hq), ks * 1024, 256)))
    for t in range(3):
        for hq in range(4):
            for u in range(2):
                dops.append(dict(acc=t, A=vr(V_D + 24 * hq + 8 * t + 4 * u, 4), B=vr(V_P + 8 * hq + 4 * u, 4),
                                 first=(hq == 0 and u == 0), reads=[]))
    count(qops)
    count(dops)

    def cvt(t, dst, lo, hi):
        def f():
            a.gap(last_mf[t], 12)
            for i in range(lo, hi):
                a.e(f"v_cvt_pk_bf16_f32 {vr(dst+i)}, {vr(ACC(t)+2*i)}, {vr(ACC(t)+2*i+1)}")
        return f

    run(qops, {(69, 1): [lambda: a.nop(5)], (70, 1): [lambda: a.nop(5)]})
    assert cur[0] == BS - 1 and not a.lg
    KF = V_V + 16

    def smf(s):
        cin = "0" if s == 0 else vr(ACC(2), 16)
        a.e(f"{MFMA} {vr(ACC(2),16)}, {vr(KF+4*s,4)}, {vr(ACC(s>>1)+4*(s&1),4)}, {cin}")
        last_mf[2] = a.n
    cvt(0, ACC(0), 0, 8)()
    smf(0)
    cvt(1, ACC(1), 0, 4)()
    smf(1)
    cvt(1, ACC(1), 4, 8)()
    smf(2)
    a.nop(2)
    smf(3)
    a.gap(last_mf[2], 12)
    for gi in range(4):
        a.lds(f"ds_write_b128 {vr(V_EX)}, {vr(ACC(2)+4*gi,4)} offset:{1024*gi}", ("ex", 0, 0))
    a.wait(lg0=True)
    barrier(BS)
    if OPT["stamps"] == 1:
        stamp(a, 2)
    a.e(f"s_cmp_ge_u32 s2, {ND1}")
    a.e("s_cbranch_scc1 L_upd")
    side = {}

    def add(i, ph, f):
        side.setdefault((i, ph), []).append(f)
    for hq in range(4):
        for t in range(2):
            for hf in range(2):
                add(24 * hq + 18 + 2 * t + hf, 1, cvt(t, V_D + 24 * hq + 8 * t, 4 * hf, 4 * hf + 4))
        for hf in range(2):
            add(24 * hq + 27 + hf, 1, cvt(2, V_D + 24 * hq + 16, 4 * hf, 4 * hf + 4))
    for i in (96, 97, 98, 104, 105, 106, 112, 113, 114):
        add(i, 1, lambda: a.nop(3))

    def p_loads(track=True):
        for hq in range(4):
            for u in range(2):
                s = f"buffer_load_dwordx4 {vr(V_P+8*hq+4*u,4)}, {vr(V_PO)}, {sr(SRD_WS,4)}, {sr(SP+hq//2)} offen offset:{2048*(hq&1)+1024*u} sc1"
                if track:
                    a.vmem(s, "p")
                else:
                    a.e(s)

    def p_chk(base, n):
        l = []
        for i in range(0, n, 2):
            l.append(f"v_xor_b32 {vr(base+i)}, {vr(V_T+(i&3))}, {vr(base+i)}")
            l.append(f"v_xor_b32 {vr(base+i+1)}, {vr(V_T+(i&3)+1)}, {vr(base+i+1)}")
            if i == 0:
                l.append(f"v_or_b32 {vr(V_FV)}, {vr(base)}, {vr(base+1)}")
            else:
                l.append(f"v_or3_b32 {vr(V_FV)}, {vr(V_FV)}, {vr(base+i)}, {vr(base+i+1)}")
        l.append(f"v_and_b32 {vr(V_FV)}, 0x80008000, {vr(V_FV)}")
        l.append(f"v_cmp_ne_u32 vcc, 0, {vr(V_FV)}")
        return l

    def emit(l, first=False):
        def f():
            if first:
                a.wait(vm0=True)
            for x in l:
                a.e(x)
        return f

    def p_branch():
        a.e("s_cbranch_vccnz L_pslow")
        a.label("L_pok")
        if OPT["stamps"] == 1:
            stamp(a, 3)

    add(OPT["pp"], 1, p_loads)
    pc = OPT["pc"]
    chk = p_chk(V_P, 32)
    nsl = 96 - pc
    for k in range(nsl):
        add(pc + k, 1, emit(chk[len(chk) * k // nsl:len(chk) * (k + 1) // nsl], k == 0))
    add(96, 0, p_branch)
    add(100, 1, emit([f"v_lshrrev_b32 {vr(V_T+i)}, 15, {vr(V_T+i)}" for i in range(4)]))

    def tagp(t, lo, hi):
        return emit([f"v_and_or_b32 {vr(ACC(t)+i)}, {vr(ACC(t)+i)}, {sr(S_C1)}, {vr(V_T+(i&3))}" for i in range(lo, hi)])

    def store(t):
        def f():
            for u in range(2):
                a.vmem(f"buffer_store_dwordx4 {vr(ACC(t)+4*u,4)}, {vr(V_PO)}, {sr(SRD_WS,4)}, {sr(SMB+t)} offen offset:{1024*u} sc1", "o")
        return f
    for t in range(2):
        add(107 + 8 * t, 1, cvt(t, ACC(t), 0, 4))
        add(108 + 8 * t, 1, cvt(t, ACC(t), 4, 8))
        add(109 + 8 * t, 1, tagp(t, 0, 4))
        add(110 + 8 * t, 1, tagp(t, 4, 8))
        add(110 + 8 * t, 1, store(t))
    if OPT["fin"] < 120:
        add(OPT["fin"], 1, lambda: barrier(cur[0] + 1))
    run(dops, side)
    cvt(2, ACC(2), 0, 8)()
    tagp(2, 0, 8)()
    store(2)()
    if OPT["fin"] >= 120:
        barrier(cur[0] + 1)
    assert cur[0] == len(STEPS), (cur, len(STEPS))
    if OPT["stamps"] == 1:
        stamp(a, 4)
    a.label("L_done")
    endpgm(a)
    a.label("L_upd")
    a.e(f"s_lshl2_add_u32 {sr(S_T0)}, s2, {sr(S_W)}")
    a.e(f"s_cmp_lg_u32 {sr(S_T0)}, {4*(NWG-1)}")
    a.e("s_cbranch_scc1 L_done")
    a.e(f"v_lshrrev_b32 {vr(V_RV)}, 2, v1")
    a.e(f"v_and_b32 {vr(V_RV+1)}, 48, {vr(V_PO)}")
    a.e(f"v_lshl_add_u32 {vr(V_RV)}, {vr(V_RV)}, 11, {vr(V_RV+1)}")
    a.e(f"s_mov_b32 {sr(S_CNT)}, {SPIN_MAX}")
    a.label("L_uloop")
    for j in range(16):
        a.e(f"s_mov_b32 {sr(S_T0)}, {(j&1)*32768+(j>>1)*131072}")
        a.e(f"buffer_load_dwordx4 {vr(V_D+4*j,4)}, {vr(V_RV)}, {sr(SRD_WS,4)}, {sr(S_T0)} offen sc1")
    a.e("s_waitcnt vmcnt(0)")
    emit(p_chk(V_D, 64))()
    a.e(f"s_sub_u32 {sr(S_CNT)}, {sr(S_CNT)}, 1")
    a.e("s_cbranch_scc1 L_uout")
    a.e("s_cbranch_vccnz L_uloop")
    a.label("L_uout")
    a.e("s_mov_b64 exec, 1")
    a.e(f"buffer_store_dword {vr(V_FL)}, off, {sr(SRD_WS,4)}, {sr(SMB+3)} sc1")
    a.e("s_branch L_done")
    a.label("L_pslow")
    a.e(f"s_mov_b32 {sr(S_CNT)}, {SPIN_MAX}")
    a.label("L_ploop")
    p_loads(False)
    a.e("s_waitcnt vmcnt(0)")
    a.vm = []
    emit(chk)()
    a.e(f"s_sub_u32 {sr(S_CNT)}, {sr(S_CNT)}, 1")
    a.e("s_cbranch_scc1 L_pok")
    a.e("s_cbranch_vccnz L_ploop")
    a.e("s_branch L_pok")


def helper_wave(a):
    V_T = 2
    V_DW, V_DX, V_DK, V_DF, V_DH = 8, 10, 12, 14, 16
    V_EXR, V_PS, V_FL, V_FV, V_PO, V_OO = 18, 19, 20, 21, 22, 23
    V_S, V_S2, V_E = 24, 32, 40
    V_R, V_A = 48, 80
    V_TG = 88
    S_TOK = S_TAB + 15
    TW, TX = S_TAB, S_TAB + 3
    TK, TV, TF, TH, SPS, SOUT = S_TAB + 6, S_TAB + 7, S_TAB + 9, S_TAB + 11, S_TAB + 13, S_TAB + 14
    SFM = S_TAB
    LW = S_T3
    t0, t1, t2 = V_T, V_T + 1, V_T + 2
    DEPTH = OPT["depth"]
    a.e(f"s_sub_u32 {sr(LW)}, {sr(S_W)}, 4")
    a.e(f"s_lshl2_add_u32 {sr(S_DONE)}, {sr(S_X)}, {sr(S_HL)}")
    a.e(f"s_lshl_b32 {sr(S_T0)}, {sr(S_DONE)}, 8")
    a.e(f"s_lshl_b32 {sr(S_T1)}, {sr(LW)}, 16")
    a.e(f"s_add_u32 {sr(S_T0)}, {sr(S_T0)}, {sr(S_T1)}")
    a.e(f"s_lshl2_add_u32 {sr(S_T1)}, {sr(S_BP)}, {sr(LW)}")
    a.e(f"s_mul_i32 {sr(S_T1)}, {sr(S_T1)}, {16*1152}")
    a.e(f"s_lshl_b32 {sr(S_M0)}, {sr(LW)}, 11")
    tab = sum((i % 3) << (2 * i) for i in range(13))
    if OPT["rot"]:
        a.e(f"s_add_u32 {sr(S_T2)}, {sr(S_BP)}, {sr(S_HL)}")
        a.e(f"s_lshl_b32 {sr(S_T2)}, {sr(S_T2)}, 1")
        a.e(f"s_lshr_b32 {sr(S_CNT)}, {tab:#x}, {sr(S_T2)}")
    else:
        a.e(f"s_mov_b32 {sr(S_CNT)}, {tab:#x}")

    def tabs(G):
        a.e(f"s_bfe_u32 {sr(S_T2)}, {sr(S_CNT)}, {(2 << 16) | (2 * G):#x}")
        a.e(f"s_mul_i32 {sr(TW+G)}, {sr(S_T2)}, {3*64*8192}")
        a.e(f"s_add_u32 {sr(TW+G)}, {sr(TW+G)}, {sr(S_T0)}")
        a.e(f"s_mul_i32 {sr(TX+G)}, {sr(S_T2)}, 384")
        a.e(f"s_add_u32 {sr(TX+G)}, {sr(TX+G)}, {sr(S_T1)}")
    tabs(0)
    rowtile_dma_offsets(a, V_DX, V_T, 1152)
    a.e(f"v_lshrrev_b32 {vr(t0)}, 4, v1")
    a.e(f"v_lshlrev_b32 {vr(t1)}, 2, {vr(t0)}")
    a.e(f"v_and_b32 {vr(t2)}, 15, v1")
    a.e(f"v_xor_b32 {vr(t1)}, {vr(t1)}, {vr(t2)}")
    a.e(f"v_lshlrev_b32 {vr(t1)}, 4, {vr(t1)}")
    a.e(f"v_lshl_add_u32 {vr(V_DW)}, {vr(t0)}, 13, {vr(t1)}")
    a.e(f"v_add_u32 {vr(V_DW+1)}, {4*8192-1024}, {vr(V_DW)}")
    a.e(f"s_mov_b32 {sr(SRD_X+2)}, 589824")
    a.e(f"s_mov_b32 {sr(SRD_X+3)}, 0x00020000")
    a.e(f"s_mov_b32 {sr(SRD_WQ+2)}, 4718592")
    a.e(f"s_mov_b32 {sr(SRD_WQ+3)}, 0x00020000")
    a.e("s_waitcnt lgkmcnt(0)")
    a.e(f"s_mov_b64 {sr(SRD_X,2)}, {sr(P_X,2)}")
    a.e(f"s_mov_b64 {sr(SRD_WQ,2)}, {sr(P_WQ,2)}")

    def setup2():
        a.e(f"s_add_u32 {sr(S_C1)}, {sr(P_WS)}, {TOK:#x}")
        a.e(f"s_addc_u32 {sr(S_C2)}, {sr(P_WS+1)}, 0")
        a.e(f"s_load_dword {sr(S_TOK)}, {sr(S_C1,2)}, 0")
        tabs(1)
        tabs(2)
        srd(a, SRD_K, P_K, 2097152)
        srd(a, SRD_V, P_V, None)
        srd(a, SRD_WO, P_WO, None)
        a.e(f"s_cmp_lt_u32 s2, {ND1}")
        a.e(f"s_cselect_b32 {sr(SRD_V+2)}, 2097152, 0")
        a.e(f"s_cselect_b32 {sr(SRD_WO+2)}, 4718592, 0")
        srd(a, SRD_WS, P_WS, WS_SIZE)
        srd(a, SRD_DBG, P_DBG, 256)
        srd(a, SRD_OUT, P_OUT, 589824)
        a.e(f"s_lshr_b32 {sr(S_T0)}, {sr(LW)}, 1")
        a.e(f"s_and_b32 {sr(S_T1)}, {sr(LW)}, 1")
        a.e(f"s_lshl_b32 {sr(S_T2)}, {sr(S_T0)}, 7")
        a.e(f"s_lshl_b32 {sr(TK)}, {sr(S_T1)}, 12")
        a.e(f"s_add_u32 {sr(S_T2)}, {sr(S_T2)}, {sr(TK)}")
        a.e(f"s_lshr_b32 {sr(TK)}, {sr(S_DONE)}, 1")
        a.e(f"s_lshl_b32 {sr(TK)}, {sr(TK)}, 13")
        a.e(f"s_lshl_b32 {sr(S_CNT)}, {sr(S_BP)}, 18")
        a.e(f"s_add_u32 {sr(TK)}, {sr(TK)}, {sr(S_CNT)}")
        a.e(f"s_add_u32 {sr(TK)}, {sr(TK)}, {sr(S_T2)}")
        a.e(f"s_lshl1_add_u32 {sr(SPS)}, {sr(S_BP)}, {sr(S_T0)}")
        a.e(f"s_lshl_b32 {sr(SPS)}, {sr(SPS)}, 5")
        a.e(f"s_add_u32 {sr(SPS)}, {sr(SPS)}, {sr(S_DONE)}")
        a.e(f"s_lshl_b32 {sr(SPS)}, {sr(SPS)}, 11")
        a.e(f"v_and_b32 {vr(t0)}, 47, v1")
        a.e(f"v_lshlrev_b32 {vr(t0)}, 4, {vr(t0)}")
        a.e(f"s_lshl_b32 {sr(S_T1)}, {sr(S_T1)}, 8")
        a.e(f"v_add_u32 {vr(t0)}, {sr(S_T1)}, {vr(t0)}")
        a.e(f"v_bfe_u32 {vr(t1)}, v1, 4, 1")
        a.e(f"v_lshl_add_u32 {vr(V_PS)}, {vr(t1)}, 10, {vr(t0)}")
        a.e(f"v_lshl_add_u32 {vr(V_EXR)}, {vr(t1)}, 11, {vr(t0)}")
        a.e(f"s_lshl_b32 {sr(S_T0)}, {sr(S_T0)}, 13")
        a.e(f"s_add_u32 {sr(S_T0)}, {sr(S_T0)}, {KB}")
        a.e(f"v_add_u32 {vr(V_EXR)}, {sr(S_T0)}, {vr(V_EXR)}")
        if OPT["krot"]:
            a.e(f"s_add_u32 {sr(S_T0)}, {sr(S_HL)}, {sr(S_BP)}")
            a.e(f"s_and_b32 {sr(S_T0)}, {sr(S_T0)}, 1")
        else:
            a.e(f"s_mov_b32 {sr(S_T0)}, 0")
        a.e(f"s_lshl1_add_u32 {sr(S_T0)}, {sr(S_X)}, {sr(S_T0)}")
        a.e(f"s_xor_b32 {sr(S_T1)}, {sr(S_T0)}, 1")
        a.e(f"s_lshl_b32 {sr(S_CNT)}, {sr(S_HL)}, 19")
        a.e(f"s_add_u32 {sr(S_T2)}, {sr(S_T2)}, {sr(S_CNT)}")
        for i, kv in enumerate((S_T0, S_T1)):
            a.e(f"s_lshl_b32 {sr(TV+i)}, {sr(kv)}, 13")
            a.e(f"s_add_u32 {sr(TV+i)}, {sr(TV+i)}, {sr(S_T2)}")
            a.e(f"s_mul_i32 {sr(TF+i)}, {sr(kv)}, {256*1152}")
        a.e(f"s_mul_i32 {sr(S_T0)}, {sr(S_BP)}, 192")
        a.e(f"s_and_b32 {sr(S_T1)}, {sr(S_BP)}, 1")
        a.e(f"s_lshl_b32 {sr(S_T2)}, {sr(S_T1)}, 7")
        a.e(f"s_sub_u32 {sr(S_T2)}, {sr(S_T0)}, {sr(S_T2)}")
        a.e(f"s_mul_i32 {sr(S_CNT)}, {sr(LW)}, {32*1152}")
        a.e(f"s_add_u32 {sr(S_T2)}, {sr(S_T2)}, {sr(S_CNT)}")
        a.e(f"s_add_u32 {sr(S_T2)}, {sr(S_T2)}, 128")
        a.e(f"s_lshl_b32 {sr(S_T1)}, {sr(S_T1)}, 6")
        a.e(f"s_add_u32 {sr(S_T0)}, {sr(S_T0)}, {sr(S_T1)}")
        a.e(f"s_mul_i32 {sr(S_CNT)}, {sr(LW)}, {16*1152}")
        a.e(f"s_add_u32 {sr(S_T0)}, {sr(S_T0)}, {sr(S_CNT)}")
        for i in range(2):
            a.e(f"s_add_u32 {sr(TH+i)}, {sr(TF+i)}, {sr(S_T2)}")
            a.e(f"s_add_u32 {sr(TF+i)}, {sr(TF+i)}, {sr(S_T0)}")
        rowtile_dma_offsets(a, V_DK, V_T, 256)
        a.e(f"v_lshrrev_b32 {vr(t0)}, 3, v1")
        a.e(f"v_mul_u32_u24 {vr(t0)}, 1152, {vr(t0)}")
        a.e(f"v_bfe_u32 {vr(t1)}, v1, 4, 1")
        a.e(f"v_lshlrev_b32 {vr(t1)}, 2, {vr(t1)}")
        a.e(f"v_and_b32 {vr(t2)}, 7, v1")
        a.e(f"v_xor_b32 {vr(t1)}, {vr(t1)}, {vr(t2)}")
        a.e(f"v_lshl_add_u32 {vr(V_DF)}, {vr(t1)}, 4, {vr(t0)}")
        a.e(f"v_add_u32 {vr(V_DF+1)}, {8*1152-1024}, {vr(V_DF)}")
        a.e(f"v_lshrrev_b32 {vr(t0)}, 2, v1")
        a.e(f"v_mul_u32_u24 {vr(t0)}, 1152, {vr(t0)}")
        a.e(f"v_and_b32 {vr(t1)}, 3, v1")
        a.e(f"v_lshl_add_u32 {vr(V_DH)}, {vr(t1)}, 4, {vr(t0)}")
        a.e(f"v_add_u32 {vr(V_DH+1)}, {16*1152-1024}, {vr(V_DH)}")
        a.e(f"v_lshlrev_b32 {vr(V_PO)}, 4, v1")
        a.e(f"v_and_b32 {vr(t0)}, 31, v1")
        a.e(f"v_mul_u32_u24 {vr(t0)}, 1152, {vr(t0)}")
        a.e(f"v_lshrrev_b32 {vr(t1)}, 5, v1")
        a.e(f"v_lshl_add_u32 {vr(V_OO)}, {vr(t1)}, 4, {vr(t0)}")
        a.e(f"s_mov_b32 {sr(S_C1)}, 0x3e0293ee")
        a.e(f"s_mov_b32 {sr(S_C2)}, 0x7fff7fff")

    def src(b):
        k = b[0]
        if k == "X":
            return V_DX, SRD_X, TX + b[1] // 3, (b[1] % 3) * 128
        if k == "W":
            return V_DW, SRD_WQ, TW + b[1] // 3, ((b[1] % 3) * 64 + b[2] * 32) * 8192
        if k == "K":
            return V_DK, SRD_K, TK, b[1] * 131072
        if k == "V":
            return V_DK, SRD_V, TV + b[1], b[2] * 131072
        if k == "F":
            return V_DF, SRD_WO, TF + b[1] // 2, ((b[1] & 1) * 128 + b[2] * 64) * 1152
        return V_DH, SRD_WO, TH + b[1] // 2, (b[1] & 1) * 128 * 1152

    NP = 2 * len(STREAM)
    free_of = {}
    occ = {}
    for b in STREAM:
        prev = occ.get(SLOT[b])
        if prev is None:
            free_of[b] = -1
        else:
            key = [kk for kk in FREE_AT if prev in kk]
            assert len(key) == 1, (b, prev)
            free_of[b] = FREE_AT[key[0]]
        occ[SLOT[b]] = b
    issued = [0]

    def piece():
        p = issued[0]
        b, i = STREAM[p // 2], p & 1
        vo, rs, tb, c = src(b)
        if i == 0:
            a.e(f"s_add_u32 m0, {sr(S_M0)}, {SLOT[b]*8192}")
            a.e(f"s_add_u32 {sr(S_SO)}, {sr(tb)}, {c}")
        a.vmem(f"buffer_load_dwordx4 {vr(vo+i)}, {sr(rs,4)}, {sr(S_SO)} offen offset:{1024*i} lds", ("pc", p))
        issued[0] += 1

    def can(k):
        return issued[0] < NP and free_of[STREAM[issued[0] // 2]] <= k

    def softmax():
        S, S2, E = V_S, V_S2, V_E
        extra = [OPT["ns"]]

        def more(n=1):
            for _ in range(n):
                if extra[0] > 0 and can(BS):
                    piece()
                    extra[0] -= 1
        for dh in range(2):
            for gi in range(2):
                a.lds(f"ds_read_b128 {vr((S2 if dh else S)+4*gi,4)}, {vr(V_EXR)} offset:{4096*dh+1024*gi}", "ex")
        more(2)
        a.wait(lg0=True)
        for i in range(8):
            a.e(f"v_add_f32 {vr(S+i)}, {vr(S+i)}, {vr(S2+i)}")
        a.e(f"v_max3_f32 {vr(E)}, {vr(S)}, {vr(S+1)}, {vr(S+2)}")
        a.e(f"v_max3_f32 {vr(E+1)}, {vr(S+3)}, {vr(S+4)}, {vr(S+5)}")
        a.e(f"v_max3_f32 {vr(E)}, {vr(E)}, {vr(S+6)}, {vr(S+7)}")

        def xred(op):
            a.e(f"{op} {vr(E)}, {vr(E)}, {vr(E+1)}")
            for sw in ("v_permlane16_swap_b32", "v_permlane32_swap_b32"):
                a.e(f"v_mov_b32 {vr(E+1)}, {vr(E)}")
                n0 = a.n
                more(1)
                a.gap(n0, 2)
                a.e(f"{sw} {vr(E)}, {vr(E+1)}")
                a.nop(1)
                a.e(f"{op} {vr(E)}, {vr(E)}, {vr(E+1)}")
        xred("v_max_f32")
        a.e(f"v_mul_f32 {vr(E)}, {sr(S_C1)}, {vr(E)}")
        for i in range(8):
            a.e(f"v_fma_f32 {vr(S+i)}, {vr(S+i)}, {sr(S_C1)}, -{vr(E)}")
        for i in range(8):
            a.e(f"v_exp_f32 {vr(S+i)}, {vr(S+i)}")
        n0 = a.n
        more(1)
        a.gap(n0, 1)
        for i in range(4):
            a.e(f"v_add_f32 {vr(E+i)}, {vr(S+2*i)}, {vr(S+2*i+1)}")
        a.e(f"v_add_f32 {vr(E)}, {vr(E)}, {vr(E+2)}")
        a.e(f"v_add_f32 {vr(E+1)}, {vr(E+1)}, {vr(E+3)}")
        xred("v_add_f32")
        a.e(f"v_rcp_f32 {vr(E)}, {vr(E)}")
        n0 = a.n
        more(1)
        a.gap(n0, 1)
        for i in range(8):
            a.e(f"v_mul_f32 {vr(S+i)}, {vr(S+i)}, {vr(E)}")
        for i in range(4):
            a.e(f"v_cvt_pk_bf16_f32 {vr(E+4+i)}, {vr(S+2*i)}, {vr(S+2*i+1)}")
        for i in range(4):
            a.e(f"v_and_or_b32 {vr(E+4+i)}, {vr(E+4+i)}, {sr(S_C2)}, {vr(V_TG+i)}")
        more(99)
        a.vmem(f"buffer_store_dwordx4 {vr(E+4,4)}, {vr(V_PS)}, {sr(SRD_WS,4)}, {sr(SPS)} offen sc1", "p")
        stamp(a, 6)
        a.e(f"s_cmp_ge_u32 s2, {ND1}")
        a.e("s_cbranch_scc1 L_done")

    did2 = False
    for k in range(len(STEPS)):
        last = 2 * STREAM.index(STEPS[k]) + 1
        while can(k - 1) and issued[0] - DEPTH < last:
            if issued[0] == DEPTH and not did2:
                stamp(a, 5)
                setup2()
                did2 = True
            if issued[0] >= DEPTH:
                a.wait(vm=[("pc", issued[0] - DEPTH)])
            assert did2 or (STREAM[issued[0] // 2][0] in "XW" and STREAM[issued[0] // 2][1] < 3)
            piece()
        assert issued[0] > last, (k, issued[0], last)
        if k == OPT["hb"]:
            a.e("s_waitcnt lgkmcnt(0)")
            a.e(f"s_add_u32 {sr(S_TOK)}, {sr(S_TOK)}, 0x11111111")
            a.e(f"v_mov_b32 {vr(V_FL)}, {sr(S_TOK)}")
            make_tags(a, V_FL, V_TG, V_FV, 15)
        a.wait(vm=[("pc", last)])
        a.e("s_barrier")
        if k == BS:
            softmax()
    stamp(a, 7)
    a.e(f"s_cmp_ge_u32 s2, {NFIN}")
    a.e("s_cbranch_scc1 L_done")
    a.e(f"s_lshl2_add_u32 {sr(S_T0)}, s2, {sr(LW)}")
    a.e(f"s_lshr_b32 {sr(SFM)}, {sr(S_T0)}, 1")
    a.e(f"s_lshl_b32 {sr(SFM)}, {sr(SFM)}, 14")
    a.e(f"s_and_b32 {sr(S_T1)}, {sr(S_T0)}, 1")
    a.e(f"s_lshl_b32 {sr(S_T1)}, {sr(S_T1)}, 10")
    a.e(f"s_add_u32 {sr(SFM)}, {sr(SFM)}, {sr(S_T1)}")
    a.e(f"s_add_u32 {sr(SFM)}, {sr(SFM)}, {MB:#x}")
    for i in range(1, 4):
        a.e(f"s_add_u32 {sr(SFM+i)}, {sr(SFM)}, {4096*i}")
    a.e(f"s_mul_i32 {sr(S_T1)}, s2, 7282")
    a.e(f"s_lshr_b32 {sr(S_T1)}, {sr(S_T1)}, 16")
    a.e(f"s_mul_i32 {sr(SOUT)}, {sr(S_T1)}, {36864-36*32}")
    a.e(f"s_lshl_b32 {sr(S_T0)}, {sr(S_T0)}, 5")
    a.e(f"s_add_u32 {sr(SOUT)}, {sr(SOUT)}, {sr(S_T0)}")
    for i in range(8):
        a.e(f"v_mov_b32 {vr(V_A+i)}, 0")
    for i in range(4):
        a.e(f"v_lshrrev_b32 {vr(V_TG+i)}, 15, {vr(V_TG+i)}")
    a.e(f"v_mov_b32 {vr(V_FL)}, 0x8000")
    a.e(f"s_mov_b32 {sr(S_C2)}, 0xffff0000")
    a.vm = []
    a.e(f"s_mov_b32 {sr(S_DONE)}, 0")
    a.e(f"s_mov_b32 {sr(S_CNT)}, {SPIN_MAX}")
    a.e(f"s_mov_b32 {sr(S_T2)}, 0x00010001")
    a.e("s_barrier")

    def ld(x):
        a.e(f"buffer_load_dwordx4 {vr(V_R+4*x,4)}, {vr(V_PO)}, {sr(SRD_WS,4)}, {sr(SFM+x//2)} offen offset:{2048*(x&1)} sc1")
    for x in range(8):
        ld(x)
    a.label("L_fin")
    for x in range(8):
        cheap, rel, nxt = a.newlabel("cheap"), a.newlabel("reload"), a.newlabel("fn")
        R = V_R + 4 * x
        a.e("s_waitcnt vmcnt(7)")
        a.e(f"s_bitcmp1_b32 {sr(S_DONE)}, {x}")
        a.e(f"s_cbranch_scc1 {cheap}")
        for i in range(4):
            a.e(f"v_xor_b32 {vr(R+i)}, {vr(V_TG+i)}, {vr(R+i)}")
        a.e(f"v_or3_b32 {vr(t0)}, {vr(R)}, {vr(R+1)}, {vr(R+2)}")
        a.e(f"v_or_b32 {vr(t0)}, {vr(t0)}, {vr(R+3)}")
        a.e(f"v_and_b32 {vr(t0)}, {sr(S_T2)}, {vr(t0)}")
        a.e(f"v_cmp_ne_u32 vcc, 0, {vr(t0)}")
        a.e(f"s_cbranch_vccnz {rel}")
        for i in range(4):
            a.e(f"v_lshl_or_b32 {vr(V_S+i)}, {vr(R+i)}, 16, {vr(V_FL)}")
            a.e(f"v_and_or_b32 {vr(R+i)}, {vr(R+i)}, {sr(S_C2)}, {vr(V_FL)}")
        for i in range(4):
            a.e(f"v_add_f32 {vr(V_A+2*i)}, {vr(V_A+2*i)}, {vr(V_S+i)}")
            a.e(f"v_add_f32 {vr(V_A+2*i+1)}, {vr(V_A+2*i+1)}, {vr(R+i)}")
        a.e(f"s_bitset1_b32 {sr(S_DONE)}, {x}")
        a.e(f"s_cmpk_eq_u32 {sr(S_DONE)}, 255")
        a.e("s_cbranch_scc1 L_findone")
        a.label(cheap)
        a.e(f"buffer_load_dword {vr(V_FV)}, off, {sr(SRD_DBG,4)}, 0")
        a.e(f"s_branch {nxt}")
        a.label(rel)
        ld(x)
        a.label(nxt)
    a.e(f"s_sub_u32 {sr(S_CNT)}, {sr(S_CNT)}, 1")
    a.e(f"s_cselect_b32 {sr(S_T2)}, 0, {sr(S_T2)}")
    a.e("s_branch L_fin")
    a.label("L_findone")
    for i in range(4):
        a.e(f"v_cvt_pk_bf16_f32 {vr(V_S+i)}, {vr(V_A+2*i)}, {vr(V_A+2*i+1)}")
    a.e(f"buffer_store_dwordx4 {vr(V_S,4)}, {vr(V_OO)}, {sr(SRD_OUT,4)}, {sr(SOUT)} offen")
    stamp(a, 8)
    endpgm(a)


def main():
    m = Asm()
    mfma_wave(m)
    a = Asm()
    a.e(f"s_cmp_ge_u32 s2, {NWG}")
    a.e("s_cbranch_scc1 L_exit")
    a.e(f"s_load_dwordx16 {sr(S_PTR,16)}, s[0:1], 0")
    a.e("v_lshrrev_b32 v2, 6, v0")
    a.e("v_and_b32 v1, 63, v0")
    a.e(f"v_readfirstlane_b32 {sr(S_W)}, v2")
    if OPT["stamps"]:
        for i in range(10):
            a.e(f"s_mov_b32 s{80+2*i}, 0")
        stamp(a, 9)
    a.e(f"s_and_b32 {sr(S_X)}, s2, 7")
    a.e(f"s_bfe_u32 {sr(S_HL)}, s2, 0x20003")
    a.e(f"s_lshr_b32 {sr(S_BP)}, s2, 5")
    a.e(f"s_cmp_lt_u32 {sr(S_W)}, 4")
    a.e("s_cbranch_scc1 L_mfma")
    helper_wave(a)
    a.l += m.l
    if OPT["stamps"]:
        stamp_out(a)
    a.label("L_exit")
    a.e("s_endpgm")
    a.label("L_end")
    out = HDR
    out += f"; @launch grid=({NWG},1,1) block=(512,1,1) lds=163840\n"
    out += f""".amdgcn_target "amdgcn-amd-amdhsa--gfx950"
.text
.globl {NAME}_kernel
.p2align 8
.type {NAME}_kernel,@function
{NAME}_kernel:
"""
    out += "\n".join(a.l) + "\n"
    out += f""".section .rodata,"a"
.p2align 6
.amdhsa_kernel {NAME}_kernel
  .amdhsa_next_free_vgpr 256
  .amdhsa_next_free_sgpr 102
  .amdhsa_accum_offset 256
  .amdhsa_group_segment_fixed_size 0
  .amdhsa_kernarg_size 64
  .amdhsa_user_sgpr_count 2
  .amdhsa_user_sgpr_kernarg_segment_ptr 1
  .amdhsa_system_sgpr_workgroup_id_x 1
.end_amdhsa_kernel
"""
    open(sys.argv[1], "w").write(out)
    print("free_at", {k[0]: v for k, v in FREE_AT.items()}, file=sys.stderr)


main()
```

```python
import sys

NAME = "standalone__gqa_block_cached__near_ridge"
HDR = open(f"cdna_kernels/{NAME}.s.ref").read().split("; Override launch")[0]

OPT = dict(stamps=0, depth=14, la=5, rot=1, krot=1, pp=52, code=1, fin=116, f1=6, f2=4, f3=2, split8=1, ns=8,
           kpos=4, hwid=0, mrg=0, prio=0, fb=3, hb=5, hprio=0, srot=0, sm=0, pf=0, pf2=3, pc0=1, sb=0, s0=1, mids=6, pst=2, bub=0, bubd=5, sx=6, so=1)
for a_ in sys.argv[2:]:
    k_, v_ = a_.split("=")
    assert k_ in OPT, k_
    OPT[k_] = int(v_)

NWG = 256
ND1 = 192
NFIN = 144
SPIN_MAX = 1 << 13
MB = 0x800000
WS_SIZE = 0x1000000
TOK = 0x1ff000
MFMA = "v_mfma_f32_32x32x16_bf16"
UID = [0]
SMOD = ("sc1", "sc0 sc1", "sc1 nt", "sc0 sc1 nt")[OPT["sm"]]


class Asm:
    def __init__(self):
        self.l = []
        self.vm = []
        self.lg = []
        self.n = 0

    def e(self, s):
        self.l.append("    " + s)
        self.n += 1

    def label(self, s):
        self.l.append(s + ":")

    def newlabel(self, p):
        UID[0] += 1
        return f"L_{p}_{UID[0]}"

    def vmem(self, s, tag):
        self.e(s)
        self.vm.append(tag)
        assert len(self.vm) <= 63, "vmcnt overflow"

    def lds(self, s, tag):
        self.e(s)
        self.lg.append(tag)

    def _need(self, q, tags):
        idx = -1
        for i, t in enumerate(q):
            if t in tags:
                idx = i
        return idx

    def wait(self, vm=(), lg=(), lg0=False, vm0=False):
        parts = []
        if vm0:
            if self.vm:
                parts.append("vmcnt(0)")
            self.vm = []
        elif vm:
            i = self._need(self.vm, vm)
            if i >= 0:
                parts.append(f"vmcnt({len(self.vm) - i - 1})")
                self.vm = self.vm[i + 1:]
        if lg0:
            if self.lg:
                parts.append("lgkmcnt(0)")
            self.lg = []
        elif lg:
            i = self._need(self.lg, lg)
            if i >= 0:
                n = min(len(self.lg) - i - 1, 15)
                parts.append(f"lgkmcnt({n})")
                self.lg = self.lg[len(self.lg) - n:] if n else []
        if parts:
            self.e("s_waitcnt " + " ".join(parts))

    def nop(self, n):
        while n > 0:
            k = min(n, 16)
            self.e(f"s_nop {k-1}")
            self.n += k - 1
            n -= k

    def gap(self, since, need):
        self.nop(need - (self.n - since))


def vr(a, n=1):
    return f"v{a}" if n == 1 else f"v[{a}:{a+n-1}]"


def sr(a, n=1):
    return f"s{a}" if n == 1 else f"s[{a}:{a+n-1}]"


S_PTR = 4
P_X, P_K, P_V, P_WQ, P_WO, P_OUT, P_DBG, P_WS = [S_PTR + 2 * i for i in range(8)]
SRD_WQ, SRD_X, SRD_K, SRD_V, SRD_WO, SRD_WS, SRD_DBG, SRD_OUT = [20 + 4 * i for i in range(8)]
S_W, S_X, S_HL, S_BP, S_T0, S_T1, S_T2, S_T3, S_SO, S_M0, S_CNT, S_DONE = range(52, 64)
S_TAB = 64
S_C1, S_C2 = 100, 101


def srd(a, d, p, nbytes):
    a.e(f"s_mov_b32 {sr(d)}, {sr(p)}")
    a.e(f"s_mov_b32 {sr(d+1)}, {sr(p+1)}")
    if nbytes is not None:
        a.e(f"s_mov_b32 {sr(d+2)}, {nbytes:#x}")
    a.e(f"s_mov_b32 {sr(d+3)}, 0x00020000")


def stamp(a, idx):
    if OPT["stamps"]:
        a.e(f"s_memrealtime s[{80+2*idx}:{81+2*idx}]")
        a.n -= 1


def endpgm(a):
    if OPT["stamps"]:
        a.e("s_branch L_stampout")
    else:
        a.e("s_endpgm")


def stamp_out(a):
    a.label("L_stampout")
    a.e("s_waitcnt vmcnt(0) lgkmcnt(0)")
    a.e("s_mov_b64 exec, -1")
    a.e("v_mov_b32 v2, 0")
    for i in range(10):
        a.e(f"v_writelane_b32 v2, s{80+2*i}, {i}")
    a.e("v_lshlrev_b32 v3, 2, v1")
    a.e("s_lshl_b32 s80, s2, 3")
    a.e(f"s_add_u32 s80, s80, {sr(S_W)}")
    a.e("s_lshl_b32 s80, s80, 6")
    a.e("s_add_u32 s80, s80, 0x400000")
    a.e("s_mov_b64 exec, 0xffff")
    a.e(f"buffer_store_dword v2, v3, {sr(SRD_WS,4)}, s80 offen")
    if OPT["hwid"]:
        a.e("s_endpgm")
    a.e("s_endpgm")


def make_tags(a, tok, d, tmp, shl):
    a.e(f"v_and_b32 {vr(d)}, 0xffff7777, {vr(tok)}")
    a.e(f"v_or_b32 {vr(d)}, 0x4444, {vr(d)}")
    a.e(f"v_and_b32 {vr(tmp)}, 3, v1")
    a.e(f"v_lshlrev_b32 {vr(tmp)}, 2, {vr(tmp)}")
    a.e(f"v_lshrrev_b32 {vr(d)}, {vr(tmp)}, {vr(d)}")
    for i in (3, 2, 1, 0):
        if shl - i:
            a.e(f"v_lshlrev_b32 {vr(d+i)}, {shl-i}, {vr(d)}")
        a.e(f"v_and_b32 {vr(d+i)}, {0x00010001 << shl:#x}, {vr(d+i)}")


def rowtile_dma_offsets(a, vdst, vt, stride):
    t0, t1, t2 = vt, vt + 1, vt + 2
    a.e(f"v_lshrrev_b32 {vr(t0)}, 3, v1")
    a.e(f"v_mul_u32_u24 {vr(t0)}, {stride}, {vr(t0)}")
    a.e(f"v_lshrrev_b32 {vr(t1)}, 4, v1")
    a.e(f"v_and_b32 {vr(t2)}, 7, v1")
    a.e(f"v_xor_b32 {vr(t1)}, {vr(t1)}, {vr(t2)}")
    a.e(f"v_lshl_add_u32 {vr(vdst)}, {vr(t1)}, 4, {vr(t0)}")
    a.e(f"v_xor_b32 {vr(t1)}, 4, {vr(t1)}")
    a.e(f"v_lshl_add_u32 {vr(t2)}, {vr(t1)}, 4, {vr(t0)}")
    a.e(f"v_add_u32 {vr(vdst+1)}, {8*stride-1024}, {vr(t2)}")


def build_stream():
    st, steps = [], []
    for c in range(9):
        if c == OPT["kpos"]:
            st += [("K", 0), ("K", 1)]
        st += [("X", c), ("W", c, 0)]
        if c == 8 and OPT["split8"]:
            steps.append(st[-1])
        st += [("W", c, 1)]
        steps.append(st[-1])
    bs = len(steps)
    if OPT["sb"]:
        steps.append(st[-1])
    for hq in range(4):
        if hq % 2 == 0:
            st += [("V", hq // 2, bb) for bb in range(4)]
        st += [("F", hq, 0)]
        if (hq or OPT["s0"]) and not (OPT["mrg"] >> (2 * hq)) & 1:
            steps.append(st[-1])
        st += [("F", hq, 1)]
        if not (OPT["mrg"] >> (2 * hq + 1)) & 1:
            steps.append(st[-1])
        st += [("H", hq)]
        steps.append(st[-1])
    slot, ring = {}, 0
    for b in st:
        if b[0] == "K":
            slot[b] = 18 + b[1]
        elif b[0] == "V" and b[1] == 0:
            slot[b] = 14 + b[2]
        else:
            slot[b] = ring % 14
            ring += 1
    assert [slot[("V", 1, bb)] - slot[("V", 1, 0)] for bb in range(4)] == [0, 1, 2, 3]
    step_of, k = {}, 0
    for b in st:
        step_of[b] = k
        while k < len(steps) and b == steps[k]:
            k += 1
    return st, steps, slot, step_of, bs


STREAM, STEPS, SLOT, STEP_OF, BS = build_stream()
KB = 18 * 8192
FREE_AT = {}
NBAR = [0]


class AG:
    def __init__(self, a, regs, bias=0):
        self.a, self.regs, self.bias = a, regs, bias

    def off(self, blockbase, inner):
        if not (self.bias <= blockbase and blockbase + 8192 <= self.bias + 65536):
            nb = min(blockbase // 65536 * 65536, 163840 - 65536)
            d = nb - self.bias
            for r in self.regs:
                if d > 0:
                    self.a.e(f"v_add_u32 {vr(r)}, {d}, {vr(r)}")
                else:
                    self.a.e(f"v_subrev_u32 {vr(r)}, {-d}, {vr(r)}")
            self.bias = nb
        return blockbase + inner - self.bias


def mfma_wave(a):
    V_T = 2
    V_RV, V_RW, V_RH, V_PO = 8, 12, 14, 15
    V_RING, NB = 16, 8
    V_V = 48
    V_P = 80
    V_D = 112
    V_ACC = 208
    V_RQ, V_RX, V_RK, V_EX = V_D, V_D + 2, V_D + 6, V_D + 10
    V_FV, V_FL = 6, 7
    SP, SMB = S_TAB, S_TAB + 2
    LA = OPT["la"]
    t0, t1, t2, t3 = V_T, V_T + 1, V_T + 2, V_T + 3
    a.label("L_mfma")
    if OPT["prio"]:
        a.e(f"s_setprio {OPT['prio']}")
    a.e(f"v_lshlrev_b32 {vr(V_PO)}, 4, v1")
    if OPT["code"]:
        a.e("s_getpc_b64 s[76:77]")
        a.label("L_pc")
        a.e(f"s_sub_u32 s76, s76, L_pc-{NAME}_kernel")
        a.e("s_subb_u32 s77, s77, 0")
        a.e(f"s_mov_b32 s78, L_end-{NAME}_kernel")
        a.e("s_mov_b32 s79, 0x00020000")
        a.e(f"s_lshl_b32 {sr(S_T0)}, {sr(S_W)}, 13")
        a.e(f"v_lshlrev_b32 {vr(t0)}, 7, v1")
        a.vmem(f"buffer_load_dword {vr(V_FV)}, {vr(t0)}, s[76:79], {sr(S_T0)} offen", "c")
    a.e(f"s_lshr_b32 {sr(S_T0)}, {sr(S_W)}, 1")
    a.e(f"s_and_b32 {sr(S_T2)}, {sr(S_W)}, 1")
    a.e(f"s_lshl2_add_u32 {sr(S_T3)}, {sr(S_HL)}, {sr(S_W)}")
    a.e(f"s_mul_i32 {sr(SMB)}, {sr(S_T3)}, 18")
    a.e(f"s_mul_i32 {sr(S_SO)}, {sr(S_BP)}, 3")
    a.e(f"s_add_u32 {sr(SMB)}, {sr(SMB)}, {sr(S_SO)}")
    a.e(f"s_and_b32 {sr(S_SO)}, {sr(S_BP)}, 1")
    a.e(f"s_lshl_b32 {sr(S_M0)}, {sr(S_SO)}, 1")
    a.e(f"s_sub_u32 {sr(SMB+2)}, {sr(SMB)}, {sr(S_M0)}")
    a.e(f"s_add_u32 {sr(SMB+2)}, {sr(SMB+2)}, 2")
    a.e(f"s_add_u32 {sr(SMB)}, {sr(SMB)}, {sr(S_SO)}")
    a.e(f"s_add_u32 {sr(SMB+1)}, {sr(SMB)}, 1")
    for t in range(3):
        if OPT["srot"] == 1:
            a.e(f"s_add_u32 {sr(S_M0)}, {sr(S_X)}, {sr(SMB+t)}")
        elif OPT["srot"] == 2:
            a.e(f"s_lshr_b32 {sr(S_M0)}, {sr(SMB+t)}, 1")
            a.e(f"s_add_u32 {sr(S_M0)}, {sr(S_X)}, {sr(S_M0)}")
        else:
            a.e(f"s_mov_b32 {sr(S_M0)}, {sr(S_X)}")
        a.e(f"s_and_b32 {sr(S_M0)}, {sr(S_M0)}, 7")
        a.e(f"s_lshl3_add_u32 {sr(SMB+t)}, {sr(SMB+t)}, {sr(S_M0)}")
        a.e(f"s_lshl_b32 {sr(SMB+t)}, {sr(SMB+t)}, 11")
        a.e(f"s_add_u32 {sr(SMB+t)}, {sr(SMB+t)}, {MB:#x}")
    PFV, PFD, PS = V_P, V_P + 2, S_TAB + 6
    if OPT["pf"]:
        c0 = OPT["pc0"]
        a.e(f"s_lshr_b32 {sr(S_SO)}, s2, 3")
        a.e(f"v_lshlrev_b32 {vr(PFV+1)}, 7, v1")
        a.e(f"s_lshr_b32 {sr(PS+2)}, {sr(S_SO)}, 1")
        a.e(f"s_lshl3_add_u32 {sr(PS+2)}, {sr(PS+2)}, {sr(S_X)}")
        a.e(f"s_and_b32 {sr(S_M0)}, {sr(S_SO)}, 1")
        a.e(f"s_lshl1_add_u32 {sr(PS+2)}, {sr(PS+2)}, {sr(S_M0)}")
        a.e(f"s_lshl_b32 {sr(PS+2)}, {sr(PS+2)}, 13")
        a.e(f"v_lshrrev_b32 {vr(t0)}, 4, v1")
        a.e(f"s_mov_b32 {sr(SRD_K+3)}, 0x00020000")
        a.e(f"s_mov_b32 {sr(SRD_V+3)}, 0x00020000")
        a.e(f"s_cmp_eq_u32 {sr(S_W)}, 1")
        a.e("s_cbranch_scc1 L_pf1")
        a.e(f"s_cmp_ge_u32 {sr(S_W)}, 2")
        a.e("s_cbranch_scc1 L_pf2")
        a.e(f"v_bfe_u32 {vr(t1)}, v1, 3, 1")
        a.e(f"v_lshl_add_u32 {vr(t0)}, {vr(t0)}, 6, {vr(t1)}")
        a.e(f"v_and_b32 {vr(t1)}, 0x380, {vr(PFV+1)}")
        a.e(f"v_lshl_add_u32 {vr(PFV)}, {vr(t0)}, 13, {vr(t1)}")
        a.e(f"s_lshl4_add_u32 {sr(PS)}, {sr(S_SO)}, {sr(S_X)}")
        a.e(f"s_lshl_b32 {sr(PS)}, {sr(PS)}, 10")
        a.e(f"s_add_u32 {sr(PS)}, {sr(PS)}, {c0*64*8192}")
        a.e(f"s_add_u32 {sr(PS+1)}, {sr(PS)}, {4*64*8192}")
        a.e(f"s_mov_b32 {sr(SRD_K+2)}, 4718592")
        a.e(f"s_mov_b32 {sr(SRD_V+2)}, 2097152")
        a.e("s_waitcnt lgkmcnt(0)")
        a.e(f"s_mov_b64 {sr(SRD_K,2)}, {sr(P_WQ,2)}")
        a.e(f"s_mov_b64 {sr(SRD_V,2)}, {sr(P_V,2)}")
        a.e("s_branch L_pf4")
        a.label("L_pf1")
        a.e(f"v_and_b32 {vr(t1)}, 15, v1")
        a.e(f"v_mul_u32_u24 {vr(t1)}, 1152, {vr(t1)}")
        a.e(f"v_lshl_add_u32 {vr(PFV)}, {vr(t0)}, 7, {vr(t1)}")
        a.e(f"s_mul_i32 {sr(PS)}, {sr(S_SO)}, {16*1152}")
        a.e(f"s_add_u32 {sr(PS)}, {sr(PS)}, {c0*128}")
        a.e(f"s_add_u32 {sr(PS+1)}, {sr(PS)}, 512")
        a.e(f"s_mov_b32 {sr(SRD_K+2)}, 589824")
        a.e("s_waitcnt lgkmcnt(0)")
        a.e(f"s_mov_b64 {sr(SRD_K,2)}, {sr(P_X,2)}")
        a.e("s_branch L_pf3")
        a.label("L_pf2")
        a.e(f"v_mov_b32 {vr(PFV)}, {vr(PFV+1)}")
        a.e(f"s_mov_b32 {sr(PS)}, {sr(PS+2)}")
        a.e(f"s_mov_b32 {sr(PS+1)}, {sr(PS+2)}")
        a.e(f"s_cmp_eq_u32 {sr(S_W)}, 2")
        a.e(f"s_cselect_b32 {sr(SRD_K+2)}, 2097152, 0")
        a.e("s_waitcnt lgkmcnt(0)")
        a.e(f"s_mov_b64 {sr(SRD_K,2)}, {sr(P_K,2)}")
        a.label("L_pf3")
        a.e(f"s_mul_i32 {sr(PS+2)}, {sr(S_X)}, 3")
        a.e(f"s_add_u32 {sr(PS+2)}, {sr(PS+2)}, {sr(S_W)}")
        a.e(f"s_sub_u32 {sr(PS+2)}, {sr(PS+2)}, 1")
        a.e(f"s_lshl_b32 {sr(PS+2)}, {sr(PS+2)}, 5")
        a.e(f"s_add_u32 {sr(PS+2)}, {sr(PS+2)}, {sr(S_SO)}")
        a.e(f"s_mul_i32 {sr(PS+2)}, {sr(PS+2)}, {48*128}")
        a.e(f"s_mov_b32 {sr(SRD_V+2)}, 4718592")
        a.e(f"s_mov_b64 {sr(SRD_V,2)}, {sr(P_WO,2)}")
        a.label("L_pf4")
    a.e("s_waitcnt lgkmcnt(0)")
    srd(a, SRD_WS, P_WS, WS_SIZE)
    a.e(f"s_mov_b32 {sr(SMB+3)}, {TOK:#x}")
    a.vmem(f"buffer_load_dword {vr(V_FL)}, off, {sr(SRD_WS,4)}, {sr(SMB+3)}", "tok")
    if OPT["pf"]:
        for i in range(2):
            a.vmem(f"buffer_load_dword {vr(PFD)}, {vr(PFV)}, {sr(SRD_K,4)}, {sr(PS+i)} offen", "pf")
    a.e(f"s_lshl3_add_u32 {sr(SP)}, {sr(S_T3)}, {sr(S_X)}")
    a.e(f"s_lshl_b32 {sr(SP)}, {sr(SP)}, 13")
    if OPT["krot"]:
        a.e(f"s_add_u32 {sr(S_SO)}, {sr(S_HL)}, {sr(S_BP)}")
        a.e(f"s_and_b32 {sr(S_SO)}, {sr(S_SO)}, 1")
        a.e(f"s_lshl_b32 {sr(S_SO)}, {sr(S_SO)}, 12")
        a.e(f"s_add_u32 {sr(SP)}, {sr(SP)}, {sr(S_SO)}")
    a.e(f"s_xor_b32 {sr(SP+1)}, {sr(SP)}, 4096")
    a.e(f"v_and_b32 {vr(t0)}, 31, v1")
    a.e(f"v_bfe_u32 {vr(t1)}, v1, 1, 3")
    a.e(f"v_lshrrev_b32 {vr(t2)}, 5, v1")
    a.e(f"v_xor_b32 {vr(t1)}, {vr(t1)}, {vr(t2)}")
    a.e(f"v_lshlrev_b32 {vr(t1)}, 4, {vr(t1)}")
    a.e(f"v_lshl_add_u32 {vr(t0)}, {vr(t0)}, 7, {vr(t1)}")
    a.e(f"s_lshl_b32 {sr(S_T0)}, {sr(S_T0)}, 12")
    a.e(f"s_lshl_b32 {sr(S_T1)}, {sr(S_W)}, 12")
    a.e(f"s_add_u32 {sr(S_T1)}, {sr(S_T1)}, {KB}")
    a.e(f"s_lshl_b32 {sr(S_SO)}, {sr(S_W)}, 13")
    a.e(f"s_add_u32 {sr(S_SO)}, {sr(S_SO)}, 65536")
    for s in range(4):
        a.e(f"v_xor_b32 {vr(t1)}, {32*s}, {vr(t0)}")
        a.e(f"v_add_u32 {vr(V_RX+s)}, {sr(S_T0)}, {vr(t1)}")
        a.e(f"v_add_u32 {vr(V_RK+s)}, {sr(S_T1)}, {vr(t1)}")
        a.e(f"v_add_u32 {vr(V_RV+s)}, {sr(S_SO)}, {vr(t1)}")
    a.e(f"v_add_u32 {vr(V_EX)}, {sr(S_T1)}, {vr(V_PO)}")
    a.e(f"v_bfe_u32 {vr(t0)}, v1, 2, 2")
    a.e(f"v_lshl_add_u32 {vr(t2)}, {vr(t2)}, 3, {vr(t0)}")
    a.e(f"v_bfe_u32 {vr(t1)}, v1, 4, 1")
    a.e(f"v_lshlrev_b32 {vr(t1)}, 5, {vr(t1)}")
    a.e(f"v_and_b32 {vr(t3)}, 1, v1")
    a.e(f"v_lshl_add_u32 {vr(t1)}, {vr(t3)}, 4, {vr(t1)}")
    a.e(f"v_bfe_u32 {vr(t3)}, v1, 1, 1")
    a.e(f"v_lshl_add_u32 {vr(t1)}, {vr(t3)}, 3, {vr(t1)}")
    a.e(f"v_lshl_add_u32 {vr(V_RH)}, {vr(t2)}, 6, {vr(t1)}")
    a.e(f"v_lshl_add_u32 {vr(V_RW)}, {vr(t2)}, 7, {vr(t1)}")
    a.e(f"v_bfe_u32 {vr(t3)}, v1, 3, 1")
    a.e(f"v_lshl_add_u32 {vr(V_RW)}, {vr(t3)}, 6, {vr(V_RW)}")
    a.e(f"v_xor_b32 {vr(V_RW+1)}, 64, {vr(V_RW)}")
    a.e(f"v_lshl_add_u32 {vr(t1)}, {vr(t2)}, 8, {vr(t1)}")
    a.e(f"s_lshl_b32 {sr(S_T2)}, {sr(S_T2)}, 1")
    a.e(f"v_xor_b32 {vr(t3)}, {sr(S_T2)}, {vr(t0)}")
    a.e(f"v_lshl_add_u32 {vr(V_RQ)}, {vr(t3)}, 6, {vr(t1)}")
    a.e(f"v_xor_b32 {vr(V_RQ+1)}, 64, {vr(V_RQ)}")
    a.e(f"s_mov_b32 {sr(S_C1)}, 0xfffefffe")
    a.e(f"s_mov_b32 {sr(S_CNT)}, {SPIN_MAX}")

    gX, gQ = AG(a, [V_RX + s for s in range(4)]), AG(a, [V_RQ, V_RQ + 1])
    gV, gW, gH = AG(a, [V_RV + s for s in range(4)], 65536), AG(a, [V_RW, V_RW + 1]), AG(a, [V_RH])
    ACC = lambda t: V_ACC + 16 * t

    remaining = {}
    cur = [-1]
    last_mf = {}

    def barrier(k):
        assert k == cur[0] + 1
        if k == OPT["fb"]:
            a.wait(vm=["tok"])
        a.e("s_barrier")
        cur[0] = k
        busy = set(t[0] for t in a.lg)
        for b, r in remaining.items():
            if r == 0 and b not in busy and b not in FREE_AT:
                FREE_AT[b] = k
        if OPT["pf"] and k == OPT["pf2"]:
            a.vmem(f"buffer_load_dword {vr(PFD)}, {vr(PFV+1)}, {sr(SRD_V,4)}, {sr(PS+2)} offen", "pf")
        if k == OPT["fb"]:
            a.e(f"v_add_u32 {vr(V_FL)}, 0x11111111, {vr(V_FL)}")
            make_tags(a, V_FL, V_T, V_FV, 15)

    def run(ops, side):
        rp = [0]

        def issue(upto):
            while rp[0] <= upto and rp[0] < len(ops):
                op = ops[rp[0]]
                for (ins, dst, grp, reg, blks, base, inner) in op["reads"]:
                    while cur[0] < max(STEP_OF[b] for b in blks):
                        barrier(cur[0] + 1)
                    off = grp.off(base, inner) if grp else inner
                    a.lds(f"{ins} {dst}, {vr(reg)} offset:{off}", (blks, rp[0], dst))
                    remaining[blks] -= 1
                rp[0] += 1
        issue(LA - 1)
        for i, op in enumerate(ops):
            for f in side.get((i, 0), []):
                f()
            a.wait(lg=[t for t in a.lg if t[1] <= i and t[2] not in op.get("lazy", ())])
            cin = "0" if op["first"] else vr(ACC(op["acc"]), 16)
            a.e(f"{MFMA} {vr(ACC(op['acc']),16)}, {op['A']}, {op['B']}, {cin}")
            last_mf[op["acc"]] = a.n
            issue(i + LA)
            for f in side.get((i, 1), []):
                f()

    def count(ops):
        for op in ops:
            for r in op["reads"]:
                remaining[r[4]] = remaining.get(r[4], 0) + 1

    def tr(i, grp, reg, blk, inner, dj):
        b = V_RING + 4 * (i % NB)
        return [("ds_read_b64_tr_b16", vr(b + 2 * j2, 2), grp, reg, (blk,), SLOT[blk] * 8192, inner + dj * j2) for j2 in range(2)]

    order = [(n, tt) for n in range(34) for tt in range(2)] + [(34, 0), (35, 0), (34, 1), (35, 1)]
    qops = []
    KBL = (("K", 0), ("K", 1))
    k0 = 4 * (OPT["kpos"] + 1)
    for i, (n, tt) in enumerate(order):
        c, s = n >> 2, n & 3
        rd = []
        xf = vr(V_V + 4 * (n % 4), 4)
        if tt == 0:
            rd.append(("ds_read_b128", xf, gX, V_RX + s, (("X", c),), SLOT[("X", c)] * 8192, 0))
        rd += tr(i, gQ, V_RQ + tt, ("W", c, s >> 1), (s & 1) * 4096, 1024)
        if tt == 1 and k0 <= n < k0 + 4:
            rd.append(("ds_read_b128", vr(V_V + 16 + 4 * (n - k0), 4), None, V_RK + n - k0, KBL, 0, 0))
        qops.append(dict(acc=tt, A=vr(V_RING + 4 * (i % NB), 4), B=xf, first=(n == 0), reads=rd))
    dops = []

    def opF(hq):
        VB = tuple(("V", hq // 2, bb) for bb in range(4))
        for f in range(2):
            for k4 in range(4):
                ks = 4 * f + k4
                for nt in range(2):
                    i = len(dops)
                    rd = []
                    if hq % 2 == 0 and nt == 0:
                        rd.append(("ds_read_b128", vr(V_V + 4 * ks, 4), gV, V_RV + k4, VB, SLOT[VB[0]] * 8192, f * 4096))
                    rd += tr(i, gW, V_RW + nt, ("F", hq, f), k4 * 2048, 512)
                    dops.append(dict(acc=nt, A=vr(V_V + 4 * ks, 4), B=vr(V_RING + 4 * (i % NB), 4), first=(ks == 0), reads=rd))

    def opH(hq, acc):
        for ks in range(8):
            i = len(dops)
            dops.append(dict(acc=acc, A=vr(V_V + 4 * ks, 4), B=vr(V_RING + 4 * (i % NB), 4), first=(ks == 0),
                             reads=tr(i, gH, V_RH, ("H", hq), ks * 1024, 256)))

    def opfin(t, acc):
        for hq in range(4):
            for u in range(2):
                dops.append(dict(acc=acc, A=vr(V_D + 24 * hq + 8 * t + 4 * u, 4), B=vr(V_P + 8 * hq + 4 * u, 4),
                                 first=(hq == 0 and u == 0), reads=[]))
    for hq in range(3):
        opF(hq)
        opH(hq, 2)
    opF(3)
    opfin(0, 2)
    opfin(1, 0)
    opH(3, 1)
    opfin(2, 2)
    count(qops)
    count(dops)

    def cvt(t, dst, lo, hi):
        def f():
            a.gap(last_mf[t], 12)
            for i in range(lo, hi):
                a.e(f"v_cvt_pk_bf16_f32 {vr(dst+i)}, {vr(ACC(t)+2*i)}, {vr(ACC(t)+2*i+1)}")
        return f

    run(qops, {(69, 1): [lambda: a.nop(5)], (70, 1): [lambda: a.nop(5)]})
    assert cur[0] == BS - 1 and not a.lg
    KF = V_V + 16

    def smf(s):
        cin = "0" if s == 0 else vr(ACC(2), 16)
        a.e(f"{MFMA} {vr(ACC(2),16)}, {vr(KF+4*s,4)}, {vr(ACC(s>>1)+4*(s&1),4)}, {cin}")
        last_mf[2] = a.n
    if OPT["stamps"] == 6:
        stamp(a, 3)
    cvt(0, ACC(0), 0, 8)()
    smf(0)
    cvt(1, ACC(1), 0, 4)()
    smf(1)
    cvt(1, ACC(1), 4, 8)()
    smf(2)
    a.nop(2)
    smf(3)
    if OPT["stamps"] == 6:
        stamp(a, 4)
    a.gap(last_mf[2], 12)
    for gi in range(4):
        a.lds(f"ds_write_b128 {vr(V_EX)}, {vr(ACC(2)+4*gi,4)} offset:{1024*gi}", ("ex", 0, 0))
    if OPT["stamps"] == 6:
        stamp(a, 5)
    a.wait(lg0=True)
    barrier(BS)
    a.e(f"s_cmp_ge_u32 s2, {ND1}")
    a.e("s_cbranch_scc1 L_upd")
    side = {}

    def add(i, ph, f):
        side.setdefault((i, ph), []).append(f)
    for hq in range(3):
        for t in range(2):
            for hf in range(2):
                add(24 * hq + 18 + 2 * t + hf, 1, cvt(t, V_D + 24 * hq + 8 * t, 4 * hf, 4 * hf + 4))
        for hf in range(2):
            add(24 * hq + 27 + hf, 1, cvt(2, V_D + 24 * hq + 16, 4 * hf, 4 * hf + 4))

    def p_loads(track=True, only=None):
        for hq in range(4):
            for u in range(2):
                if only is not None and only != 2 * hq + u:
                    continue
                s = f"buffer_load_dwordx4 {vr(V_P+8*hq+4*u,4)}, {vr(V_PO)}, {sr(SRD_WS,4)}, {sr(SP+hq//2)} offen offset:{2048*(hq&1)+1024*u} sc1"
                if track:
                    a.vmem(s, ("p", 2 * hq + u))
                else:
                    a.e(s)

    def p_chk(base, n):
        l = []
        for i in range(0, n, 4):
            for j in range(4):
                l.append(f"v_xor_b32 {vr(base+i+j)}, {vr(V_T+j)}, {vr(base+i+j)}")
            if i == 0:
                l.append(f"v_or_b32 {vr(V_FV)}, {vr(base)}, {vr(base+1)}")
            else:
                l.append(f"v_or3_b32 {vr(V_FV)}, {vr(V_FV)}, {vr(base+i)}, {vr(base+i+1)}")
            l.append(f"v_or3_b32 {vr(V_FV)}, {vr(V_FV)}, {vr(base+i+2)}, {vr(base+i+3)}")
        l.append(f"v_and_b32 {vr(V_FV)}, 0x80008000, {vr(V_FV)}")
        l.append(f"v_cmp_ne_u32 vcc, 0, {vr(V_FV)}")
        return l

    def emit(l, first=False):
        def f():
            if first:
                a.wait(vm0=True)
            for x in l:
                a.e(x)
        return f

    def p_entry():
        assert not a.lg
        a.label("L_pagain")
        if OPT["stamps"] == 1:
            stamp(a, 3)

    def p_branch():
        assert not a.lg
        a.e("s_cbranch_vccnz L_pslow")
        a.label("L_pok")

    for j in range(8):
        add(OPT["pp"] + OPT["pst"] * j, 1, lambda j=j: p_loads(True, j))
    chk = p_chk(V_P, 32)
    add(87, 1, p_entry)
    add(87, 1, lambda: a.wait(vm=[("p", 0)]))
    add(87, 1, emit(chk[0:6]))
    for k in range(7):
        add(88 + k, 1, lambda k=k: a.wait(vm=[("p", k + 1)]))
        add(88 + k, 1, emit(chk[6 * k + 6:6 * k + 12] + (chk[48:] if k == 6 else [])))
    add(90, 1, cvt(0, V_D + 72, 0, 2))
    add(91, 1, cvt(0, V_D + 72, 2, 4))
    add(92, 1, cvt(0, V_D + 72, 4, 6))
    add(93, 1, cvt(0, V_D + 72, 6, 8))
    add(95, 1, p_branch)
    add(95, 1, emit([f"v_lshrrev_b32 {vr(V_T+i)}, 15, {vr(V_T+i)}" for i in range(4)]))
    add(96, 1, cvt(1, V_D + 80, 0, 4))
    add(97, 1, cvt(1, V_D + 80, 4, 8))

    def tagp(t, lo, hi):
        return emit([f"v_and_or_b32 {vr(ACC(t)+i)}, {vr(ACC(t)+i)}, {sr(S_C1)}, {vr(V_T+(i&3))}" for i in range(lo, hi)])

    def store(t, acc, u):
        def f():
            a.vmem(f"buffer_store_dwordx4 {vr(ACC(acc)+4*u,4)}, {vr(V_PO)}, {sr(SRD_WS,4)}, {sr(SMB+t)} offen offset:{1024*u} {SMOD}", "o")
        return f
    for t, acc, i in ((0, 2, 98), (1, 0, 106)):
        for u in range(2):
            add(i + 2 * u, 1, cvt(acc, ACC(acc), 4 * u, 4 * u + 4))
            add(i + 2 * u + 1, 1, tagp(acc, 4 * u, 4 * u + 4))
            add(i + 2 * u + 1, 1, store(t, acc, u))
    for i in (112, 113, 114):
        add(i, 1, lambda: a.nop(3))
    add(115, 1, cvt(1, V_D + 88, 0, 4))
    add(116, 1, cvt(1, V_D + 88, 4, 8))
    add(117, 1, lambda: a.nop(2))
    if OPT["fin"] < 120:
        add(OPT["fin"], 1, lambda: barrier(cur[0] + 1))
    run(dops, side)
    for u in range(2):
        cvt(2, ACC(2), 4 * u, 4 * u + 4)()
        tagp(2, 4 * u, 4 * u + 4)()
        store(2, 2, u)()
    if OPT["stamps"] in (1, 5):
        stamp(a, 4)
    if OPT["fin"] >= 120:
        a.e(f"s_waitcnt vmcnt({OPT['f1']})")
        if OPT["stamps"] == 5:
            stamp(a, 0)
        barrier(cur[0] + 1)
    assert cur[0] == len(STEPS), (cur, len(STEPS))
    for f in ("f2", "f3"):
        a.e(f"s_waitcnt vmcnt({OPT[f]})")
        if OPT["stamps"] == 5:
            stamp(a, int(f[1]) - 1)
        a.e("s_barrier")
    a.label("L_done")
    endpgm(a)
    a.label("L_upd")
    a.e(f"s_lshl2_add_u32 {sr(S_T0)}, s2, {sr(S_W)}")
    a.e(f"s_cmp_lg_u32 {sr(S_T0)}, {4*(NWG-1)}")
    a.e("s_cbranch_scc1 L_done")
    a.e(f"v_lshrrev_b32 {vr(V_RV)}, 2, v1")
    a.e(f"v_and_b32 {vr(V_RV+1)}, 48, {vr(V_PO)}")
    a.e(f"v_lshl_add_u32 {vr(V_RV)}, {vr(V_RV)}, 11, {vr(V_RV+1)}")
    a.e(f"s_mov_b32 {sr(S_CNT)}, {SPIN_MAX}")
    a.label("L_uloop")
    for j in range(16):
        a.e(f"s_mov_b32 {sr(S_T0)}, {(j&1)*32768+(j>>1)*131072}")
        a.e(f"buffer_load_dwordx4 {vr(V_D+4*j,4)}, {vr(V_RV)}, {sr(SRD_WS,4)}, {sr(S_T0)} offen sc1")
    a.e("s_waitcnt vmcnt(0)")
    emit(p_chk(V_D, 64))()
    a.e(f"s_sub_u32 {sr(S_CNT)}, {sr(S_CNT)}, 1")
    a.e("s_cbranch_scc1 L_uout")
    a.e("s_cbranch_vccnz L_uloop")
    a.label("L_uout")
    a.e("s_mov_b64 exec, 1")
    a.e(f"buffer_store_dword {vr(V_FL)}, off, {sr(SRD_WS,4)}, {sr(SMB+3)} sc1")
    a.e("s_branch L_done")
    a.label("L_pslow")
    a.e(f"s_sub_u32 {sr(S_CNT)}, {sr(S_CNT)}, 1")
    a.e("s_cbranch_scc1 L_pok")
    p_loads(False)
    a.e("s_waitcnt vmcnt(0)")
    a.e("s_branch L_pagain")


def helper_wave(a):
    V_T = 2
    V_DW, V_DX, V_DK, V_DF, V_DH = 8, 10, 12, 14, 16
    V_EXR, V_PS, V_FL, V_FV, V_PO, V_OO = 18, 19, 20, 21, 22, 23
    V_S, V_S2, V_E = 24, 32, 40
    V_R, V_A = 48, 80
    V_TG = 92
    S_TOK = S_TAB + 15
    TW, TX = S_TAB, S_TAB + 3
    TK, TV, TF, TH, SPS, SOUT = S_TAB + 6, S_TAB + 7, S_TAB + 9, S_TAB + 11, S_TAB + 13, S_TAB + 14
    SFM = S_TAB
    LW = S_T3
    t0, t1, t2 = V_T, V_T + 1, V_T + 2
    DEPTH = OPT["depth"]
    a.e(f"s_sub_u32 {sr(LW)}, {sr(S_W)}, 4")
    if OPT["hprio"]:
        a.e(f"s_setprio {OPT['hprio']}")
    a.e(f"s_lshl2_add_u32 {sr(S_DONE)}, {sr(S_X)}, {sr(S_HL)}")
    a.e(f"s_lshl_b32 {sr(S_T0)}, {sr(S_DONE)}, 8")
    a.e(f"s_lshl_b32 {sr(S_T1)}, {sr(LW)}, 16")
    a.e(f"s_add_u32 {sr(S_T0)}, {sr(S_T0)}, {sr(S_T1)}")
    a.e(f"s_lshl2_add_u32 {sr(S_T1)}, {sr(S_BP)}, {sr(LW)}")
    a.e(f"s_mul_i32 {sr(S_T1)}, {sr(S_T1)}, {16*1152}")
    a.e(f"s_lshl_b32 {sr(S_M0)}, {sr(LW)}, 11")
    tab = sum((i % 3) << (2 * i) for i in range(13))
    if OPT["rot"]:
        a.e(f"s_add_u32 {sr(S_T2)}, {sr(S_BP)}, {sr(S_HL)}")
        a.e(f"s_lshl_b32 {sr(S_T2)}, {sr(S_T2)}, 1")
        a.e(f"s_lshr_b32 {sr(S_CNT)}, {tab:#x}, {sr(S_T2)}")
    else:
        a.e(f"s_mov_b32 {sr(S_CNT)}, {tab:#x}")

    def tabs(G):
        a.e(f"s_bfe_u32 {sr(S_T2)}, {sr(S_CNT)}, {(2 << 16) | (2 * G):#x}")
        a.e(f"s_mul_i32 {sr(TW+G)}, {sr(S_T2)}, {3*64*8192}")
        a.e(f"s_add_u32 {sr(TW+G)}, {sr(TW+G)}, {sr(S_T0)}")
        a.e(f"s_mul_i32 {sr(TX+G)}, {sr(S_T2)}, 384")
        a.e(f"s_add_u32 {sr(TX+G)}, {sr(TX+G)}, {sr(S_T1)}")
    tabs(0)
    rowtile_dma_offsets(a, V_DX, V_T, 1152)
    a.e(f"v_lshrrev_b32 {vr(t0)}, 4, v1")
    a.e(f"v_lshlrev_b32 {vr(t1)}, 2, {vr(t0)}")
    a.e(f"v_and_b32 {vr(t2)}, 15, v1")
    a.e(f"v_xor_b32 {vr(t1)}, {vr(t1)}, {vr(t2)}")
    a.e(f"v_lshlrev_b32 {vr(t1)}, 4, {vr(t1)}")
    a.e(f"v_lshl_add_u32 {vr(V_DW)}, {vr(t0)}, 13, {vr(t1)}")
    a.e(f"v_add_u32 {vr(V_DW+1)}, {4*8192-1024}, {vr(V_DW)}")
    a.e(f"s_mov_b32 {sr(SRD_X+2)}, 589824")
    a.e(f"s_mov_b32 {sr(SRD_X+3)}, 0x00020000")
    a.e(f"s_mov_b32 {sr(SRD_WQ+2)}, 4718592")
    a.e(f"s_mov_b32 {sr(SRD_WQ+3)}, 0x00020000")
    a.e("s_waitcnt lgkmcnt(0)")
    a.e(f"s_mov_b64 {sr(SRD_X,2)}, {sr(P_X,2)}")
    a.e(f"s_mov_b64 {sr(SRD_WQ,2)}, {sr(P_WQ,2)}")

    def setup2():
        a.e(f"s_add_u32 {sr(S_C1)}, {sr(P_WS)}, {TOK:#x}")
        a.e(f"s_addc_u32 {sr(S_C2)}, {sr(P_WS+1)}, 0")
        a.e(f"s_load_dword {sr(S_TOK)}, {sr(S_C1,2)}, 0")
        tabs(1)
        tabs(2)
        srd(a, SRD_K, P_K, 2097152)
        srd(a, SRD_V, P_V, None)
        srd(a, SRD_WO, P_WO, None)
        a.e(f"s_cmp_lt_u32 s2, {ND1}")
        a.e(f"s_cselect_b32 {sr(SRD_V+2)}, 2097152, 0")
        a.e(f"s_cselect_b32 {sr(SRD_WO+2)}, 4718592, 0")
        srd(a, SRD_WS, P_WS, WS_SIZE)
        srd(a, SRD_OUT, P_OUT, 589824)
        a.e(f"s_lshr_b32 {sr(S_T0)}, {sr(LW)}, 1")
        a.e(f"s_and_b32 {sr(S_T1)}, {sr(LW)}, 1")
        a.e(f"s_lshl_b32 {sr(S_T2)}, {sr(S_T0)}, 7")
        a.e(f"s_lshl_b32 {sr(TK)}, {sr(S_T1)}, 12")
        a.e(f"s_add_u32 {sr(S_T2)}, {sr(S_T2)}, {sr(TK)}")
        a.e(f"s_lshr_b32 {sr(TK)}, {sr(S_DONE)}, 1")
        a.e(f"s_lshl_b32 {sr(TK)}, {sr(TK)}, 13")
        a.e(f"s_lshl_b32 {sr(S_CNT)}, {sr(S_BP)}, 18")
        a.e(f"s_add_u32 {sr(TK)}, {sr(TK)}, {sr(S_CNT)}")
        a.e(f"s_add_u32 {sr(TK)}, {sr(TK)}, {sr(S_T2)}")
        a.e(f"s_lshl1_add_u32 {sr(SPS)}, {sr(S_BP)}, {sr(S_T0)}")
        a.e(f"s_lshl_b32 {sr(SPS)}, {sr(SPS)}, 5")
        a.e(f"s_add_u32 {sr(SPS)}, {sr(SPS)}, {sr(S_DONE)}")
        a.e(f"s_lshl_b32 {sr(SPS)}, {sr(SPS)}, 11")
        a.e(f"v_and_b32 {vr(t0)}, 47, v1")
        a.e(f"v_lshlrev_b32 {vr(t0)}, 4, {vr(t0)}")
        a.e(f"s_lshl_b32 {sr(S_T1)}, {sr(S_T1)}, 8")
        a.e(f"v_add_u32 {vr(t0)}, {sr(S_T1)}, {vr(t0)}")
        a.e(f"v_bfe_u32 {vr(t1)}, v1, 4, 1")
        a.e(f"v_lshl_add_u32 {vr(V_PS)}, {vr(t1)}, 10, {vr(t0)}")
        a.e(f"v_lshl_add_u32 {vr(V_EXR)}, {vr(t1)}, 11, {vr(t0)}")
        a.e(f"s_lshl_b32 {sr(S_T0)}, {sr(S_T0)}, 13")
        a.e(f"s_add_u32 {sr(S_T0)}, {sr(S_T0)}, {KB}")
        a.e(f"v_add_u32 {vr(V_EXR)}, {sr(S_T0)}, {vr(V_EXR)}")
        if OPT["krot"]:
            a.e(f"s_add_u32 {sr(S_T0)}, {sr(S_HL)}, {sr(S_BP)}")
            a.e(f"s_and_b32 {sr(S_T0)}, {sr(S_T0)}, 1")
        else:
            a.e(f"s_mov_b32 {sr(S_T0)}, 0")
        a.e(f"s_lshl1_add_u32 {sr(S_T0)}, {sr(S_X)}, {sr(S_T0)}")
        a.e(f"s_xor_b32 {sr(S_T1)}, {sr(S_T0)}, 1")
        a.e(f"s_lshl_b32 {sr(S_CNT)}, {sr(S_HL)}, 19")
        a.e(f"s_add_u32 {sr(S_T2)}, {sr(S_T2)}, {sr(S_CNT)}")
        for i, kv in enumerate((S_T0, S_T1)):
            a.e(f"s_lshl_b32 {sr(TV+i)}, {sr(kv)}, 13")
            a.e(f"s_add_u32 {sr(TV+i)}, {sr(TV+i)}, {sr(S_T2)}")
            a.e(f"s_mul_i32 {sr(TF+i)}, {sr(kv)}, {256*1152}")
        a.e(f"s_mul_i32 {sr(S_T0)}, {sr(S_BP)}, 192")
        a.e(f"s_and_b32 {sr(S_T1)}, {sr(S_BP)}, 1")
        a.e(f"s_lshl_b32 {sr(S_T2)}, {sr(S_T1)}, 7")
        a.e(f"s_sub_u32 {sr(S_T2)}, {sr(S_T0)}, {sr(S_T2)}")
        a.e(f"s_mul_i32 {sr(S_CNT)}, {sr(LW)}, {32*1152}")
        a.e(f"s_add_u32 {sr(S_T2)}, {sr(S_T2)}, {sr(S_CNT)}")
        a.e(f"s_add_u32 {sr(S_T2)}, {sr(S_T2)}, 128")
        a.e(f"s_lshl_b32 {sr(S_T1)}, {sr(S_T1)}, 6")
        a.e(f"s_add_u32 {sr(S_T0)}, {sr(S_T0)}, {sr(S_T1)}")
        a.e(f"s_mul_i32 {sr(S_CNT)}, {sr(LW)}, {16*1152}")
        a.e(f"s_add_u32 {sr(S_T0)}, {sr(S_T0)}, {sr(S_CNT)}")
        for i in range(2):
            a.e(f"s_add_u32 {sr(TH+i)}, {sr(TF+i)}, {sr(S_T2)}")
            a.e(f"s_add_u32 {sr(TF+i)}, {sr(TF+i)}, {sr(S_T0)}")
        rowtile_dma_offsets(a, V_DK, V_T, 256)
        a.e(f"v_lshrrev_b32 {vr(t0)}, 3, v1")
        a.e(f"v_mul_u32_u24 {vr(t0)}, 1152, {vr(t0)}")
        a.e(f"v_bfe_u32 {vr(t1)}, v1, 4, 1")
        a.e(f"v_lshlrev_b32 {vr(t1)}, 2, {vr(t1)}")
        a.e(f"v_and_b32 {vr(t2)}, 7, v1")
        a.e(f"v_xor_b32 {vr(t1)}, {vr(t1)}, {vr(t2)}")
        a.e(f"v_lshl_add_u32 {vr(V_DF)}, {vr(t1)}, 4, {vr(t0)}")
        a.e(f"v_add_u32 {vr(V_DF+1)}, {8*1152-1024}, {vr(V_DF)}")
        a.e(f"v_lshrrev_b32 {vr(t0)}, 2, v1")
        a.e(f"v_mul_u32_u24 {vr(t0)}, 1152, {vr(t0)}")
        a.e(f"v_and_b32 {vr(t1)}, 3, v1")
        a.e(f"v_lshl_add_u32 {vr(V_DH)}, {vr(t1)}, 4, {vr(t0)}")
        a.e(f"v_add_u32 {vr(V_DH+1)}, {16*1152-1024}, {vr(V_DH)}")
        a.e(f"s_mov_b32 {sr(S_C1)}, 0x3e0293ee")
        a.e(f"s_mov_b32 {sr(S_C2)}, 0x7fff7fff")

    def src(b):
        k = b[0]
        if k == "X":
            return V_DX, SRD_X, TX + b[1] // 3, (b[1] % 3) * 128
        if k == "W":
            return V_DW, SRD_WQ, TW + b[1] // 3, ((b[1] % 3) * 64 + b[2] * 32) * 8192
        if k == "K":
            return V_DK, SRD_K, TK, b[1] * 131072
        if k == "V":
            return V_DK, SRD_V, TV + b[1], b[2] * 131072
        if k == "F":
            return V_DF, SRD_WO, TF + b[1] // 2, ((b[1] & 1) * 128 + b[2] * 64) * 1152
        return V_DH, SRD_WO, TH + b[1] // 2, (b[1] & 1) * 128 * 1152

    NP = 2 * len(STREAM)
    free_of = {}
    occ = {}
    for b in STREAM:
        prev = occ.get(SLOT[b])
        if prev is None:
            free_of[b] = -1
        else:
            key = [kk for kk in FREE_AT if prev in kk]
            assert len(key) == 1, (b, prev)
            free_of[b] = FREE_AT[key[0]]
        occ[SLOT[b]] = b
    issued = [0]

    def piece():
        p = issued[0]
        b, i = STREAM[p // 2], p & 1
        vo, rs, tb, c = src(b)
        if i == 0:
            a.e(f"s_add_u32 m0, {sr(S_M0)}, {SLOT[b]*8192}")
            a.e(f"s_add_u32 {sr(S_SO)}, {sr(tb)}, {c}")
        a.vmem(f"buffer_load_dwordx4 {vr(vo+i)}, {sr(rs,4)}, {sr(S_SO)} offen offset:{1024*i} lds", ("pc", p))
        issued[0] += 1

    def can(k):
        return issued[0] < NP and free_of[STREAM[issued[0] // 2]] <= k

    def softmax():
        S, S2, E = V_S, V_S2, V_E
        extra = [OPT["ns"]]

        def more(n=1):
            for _ in range(n):
                if extra[0] > 0 and can(BS):
                    piece()
                    extra[0] -= 1
        def mid():
            lab = a.newlabel("nomid")
            km = BS + 1 + len(skip)
            last = 2 * STREAM.index(STEPS[km]) + 1
            assert issued[0] > last
            a.e(f"s_cmp_ge_u32 s2, {ND1}")
            a.e(f"s_cbranch_scc1 {lab}")
            a.wait(vm=[("pc", last)])
            a.e("s_barrier")
            a.label(lab)
            skip.add(km)
        for dh in range(2):
            for gi in range(2):
                a.lds(f"ds_read_b128 {vr((S2 if dh else S)+4*gi,4)}, {vr(V_EXR)} offset:{4096*dh+1024*gi}", "ex")
        more(2)
        a.wait(lg0=True)
        for i in range(8):
            a.e(f"v_add_f32 {vr(S+i)}, {vr(S+i)}, {vr(S2+i)}")
        if OPT["mids"] & 1:
            mid()
        a.e(f"v_max3_f32 {vr(E)}, {vr(S)}, {vr(S+1)}, {vr(S+2)}")
        a.e(f"v_max3_f32 {vr(E+1)}, {vr(S+3)}, {vr(S+4)}, {vr(S+5)}")
        a.e(f"v_max3_f32 {vr(E)}, {vr(E)}, {vr(S+6)}, {vr(S+7)}")

        def xred(op):
            a.e(f"{op} {vr(E)}, {vr(E)}, {vr(E+1)}")
            for sw in ("v_permlane16_swap_b32", "v_permlane32_swap_b32"):
                a.e(f"v_mov_b32 {vr(E+1)}, {vr(E)}")
                n0 = a.n
                more(1)
                a.gap(n0, 2)
                a.e(f"{sw} {vr(E)}, {vr(E+1)}")
                a.nop(1)
                a.e(f"{op} {vr(E)}, {vr(E)}, {vr(E+1)}")
        xred("v_max_f32")
        if OPT["mids"] & 2:
            mid()
        a.e(f"v_mul_f32 {vr(E)}, {sr(S_C1)}, {vr(E)}")
        for i in range(8):
            a.e(f"v_fma_f32 {vr(S+i)}, {vr(S+i)}, {sr(S_C1)}, -{vr(E)}")
        for i in range(8):
            a.e(f"v_exp_f32 {vr(S+i)}, {vr(S+i)}")
        n0 = a.n
        more(1)
        a.gap(n0, 1)
        for i in range(4):
            a.e(f"v_add_f32 {vr(E+i)}, {vr(S+2*i)}, {vr(S+2*i+1)}")
        a.e(f"v_add_f32 {vr(E)}, {vr(E)}, {vr(E+2)}")
        a.e(f"v_add_f32 {vr(E+1)}, {vr(E+1)}, {vr(E+3)}")
        if OPT["mids"] & 4:
            mid()
        xred("v_add_f32")
        a.e(f"v_rcp_f32 {vr(E)}, {vr(E)}")
        n0 = a.n
        more(1)
        a.gap(n0, 1)
        for i in range(8):
            a.e(f"v_mul_f32 {vr(S+i)}, {vr(S+i)}, {vr(E)}")
        for i in range(4):
            a.e(f"v_cvt_pk_bf16_f32 {vr(E+4+i)}, {vr(S+2*i)}, {vr(S+2*i+1)}")
        for i in range(4):
            a.e(f"v_and_or_b32 {vr(E+4+i)}, {vr(E+4+i)}, {sr(S_C2)}, {vr(V_TG+i)}")
        more(99)
        a.vmem(f"buffer_store_dwordx4 {vr(E+4,4)}, {vr(V_PS)}, {sr(SRD_WS,4)}, {sr(SPS)} offen sc1", "p")
        stamp(a, 6)
        a.e(f"s_cmp_ge_u32 s2, {ND1}")
        a.e("s_cbranch_scc1 L_done")

    did2 = False
    skip = set()
    PB = 2 * STREAM.index(("W", 8, 1)) + 2 + OPT["bub"] if OPT["bub"] else -1
    for k in range(len(STEPS)):
        if k in skip:
            continue
        last = 2 * STREAM.index(STEPS[k]) + 1
        lim = last + OPT["sx"] if k == BS and OPT["sb"] else last
        while can(k - 1) and issued[0] - (OPT["bubd"] if issued[0] == PB else DEPTH) < lim:
            if issued[0] == PB:
                a.wait(vm=[("pc", PB - OPT["bubd"])])
            if issued[0] == DEPTH and not did2:
                if OPT["stamps"] != 6:
                    stamp(a, 5)
                setup2()
                did2 = True
            if issued[0] >= DEPTH:
                a.wait(vm=[("pc", issued[0] - DEPTH)])
            assert did2 or (STREAM[issued[0] // 2][0] in "XW" and STREAM[issued[0] // 2][1] < 3)
            piece()
        assert issued[0] > last, (k, issued[0], last)
        if k == OPT["hb"]:
            a.e("s_waitcnt lgkmcnt(0)")
            a.e(f"s_add_u32 {sr(S_TOK)}, {sr(S_TOK)}, 0x11111111")
            a.e(f"v_mov_b32 {vr(V_FL)}, {sr(S_TOK)}")
            make_tags(a, V_FL, V_TG, V_FV, 15)
        a.wait(vm=[("pc", last)])
        a.e("s_barrier")
        sl = {1: (0, BS - 1, BS), 6: (BS - 2, BS - 1, BS), 2: (0, 2, 4, 6, 8), 3: tuple(BS + OPT["so"] + 2 * i_ for i_ in range(5))}.get(OPT["stamps"], ())
        if k in sl:
            stamp(a, sl.index(k))
        if k == BS:
            softmax()
    stamp(a, 7)
    SO = SFM + 3
    V_L, V_SEL = V_DW, V_DK
    a.e(f"s_lshr_b32 {sr(S_T0)}, {sr(S_X)}, 1")
    a.e(f"s_lshl2_add_u32 {sr(S_T0)}, {sr(S_HL)}, {sr(S_T0)}")
    a.e(f"s_and_b32 {sr(S_T1)}, {sr(S_X)}, 1")
    a.e(f"s_mul_i32 {sr(S_T2)}, {sr(S_BP)}, 3")
    a.e(f"s_and_b32 {sr(S_CNT)}, {sr(S_BP)}, 1")
    a.e(f"s_add_u32 {sr(SO)}, {sr(S_T2)}, {sr(S_CNT)}")
    a.e(f"s_lshl_b32 {sr(S_CNT)}, {sr(S_CNT)}, 1")
    a.e(f"s_sub_u32 {sr(SO+2)}, {sr(S_T2)}, {sr(S_CNT)}")
    a.e(f"s_add_u32 {sr(SO+2)}, {sr(SO+2)}, 2")
    a.e(f"s_mul_i32 {sr(S_T2)}, {sr(S_T0)}, {18*16384}")
    a.e(f"s_lshl1_add_u32 {sr(S_CNT)}, {sr(LW)}, {sr(S_T1)}")
    a.e(f"s_lshl_b32 {sr(S_CNT)}, {sr(S_CNT)}, 8")
    a.e(f"s_add_u32 {sr(S_T2)}, {sr(S_T2)}, {sr(S_CNT)}")
    a.e(f"s_add_u32 {sr(S_T2)}, {sr(S_T2)}, {MB:#x}")
    a.e(f"s_lshl1_add_u32 {sr(S_T0)}, {sr(S_T0)}, {sr(S_T1)}")
    a.e(f"s_mul_i32 {sr(S_T0)}, {sr(S_T0)}, {16*1152}")
    a.e(f"s_lshl4_add_u32 {sr(S_T0)}, {sr(LW)}, {sr(S_T0)}")
    for t in (0, 2):
        a.e(f"s_lshl_b32 {sr(SFM+t)}, {sr(SO+t)}, 14")
        a.e(f"s_add_u32 {sr(SFM+t)}, {sr(SFM+t)}, {sr(S_T2)}")
        a.e(f"s_lshl_b32 {sr(SO+t)}, {sr(SO+t)}, 6")
        a.e(f"s_add_u32 {sr(SO+t)}, {sr(SO+t)}, {sr(S_T0)}")
    a.e(f"s_add_u32 {sr(SFM+1)}, {sr(SFM)}, 16384")
    a.e(f"s_add_u32 {sr(SO+1)}, {sr(SO)}, 64")
    a.e(f"v_and_b32 {vr(t0)}, 15, v1")
    a.e(f"v_lshrrev_b32 {vr(t1)}, 4, v1")
    a.e(f"v_lshlrev_b32 {vr(V_L)}, 4, {vr(t0)}")
    a.e(f"v_lshl_add_u32 {vr(V_L)}, {vr(t1)}, 11, {vr(V_L)}")
    a.e(f"v_add_u32 {vr(V_L+1)}, 8192, {vr(V_L)}")
    a.e(f"v_mul_u32_u24 {vr(V_OO)}, 1152, {vr(t0)}")
    a.e(f"v_lshl_add_u32 {vr(V_OO)}, {vr(t1)}, 3, {vr(V_OO)}")
    a.e(f"v_and_b32 {vr(t1)}, 1, v1")
    a.e(f"v_lshlrev_b32 {vr(t1)}, 4, {vr(t1)}")
    a.e(f"v_mov_b32 {vr(t2)}, 0x3f00")
    a.e(f"v_lshlrev_b32 {vr(t1)}, {vr(t1)}, {vr(t2)}")
    a.e(f"v_lshrrev_b32 {vr(t0)}, 1, {vr(t0)}")
    for r in range(4):
        a.e(f"v_cmp_eq_u32 vcc, {r}, {vr(t0)}")
        a.e(f"v_cndmask_b32 {vr(V_SEL+r)}, 0, {vr(t1)}, vcc")
    for i in range(4):
        a.e(f"v_lshrrev_b32 {vr(V_TG+i)}, 15, {vr(V_TG+i)}")
    a.e(f"s_mov_b32 {sr(S_C2)}, 0x00010001")
    a.e(f"s_mov_b32 {sr(S_CNT)}, {SPIN_MAX}")
    a.vm = []
    M16 = "v_mfma_f32_16x16x32_bf16"

    def ld(t):
        for j in range(2):
            a.e(f"buffer_load_dwordx4 {vr(V_R+8*t+4*j,4)}, {vr(V_L+j)}, {sr(SRD_WS,4)}, {sr(SFM+t)} offen sc1")
    for t in range(3):
        a.e("s_barrier")
        ld(t)
    for t in range(3):
        R, D = V_R + 8 * t, V_A + 4 * 0
        a.e(f"s_waitcnt vmcnt({(4, 3, 2)[t]})")
        a.label(f"L_fin{t}")
        for i in range(8):
            a.e(f"v_xor_b32 {vr(R+i)}, {vr(V_TG+(i&3))}, {vr(R+i)}")
        a.e(f"{M16} {vr(D,4)}, {vr(V_SEL,4)}, {vr(R,4)}, 0")
        for i in range(4):
            a.e(f"v_or_b32 {vr(V_S+i)}, {sr(S_C2)}, {vr(R+i)}")
        a.e(f"{M16} {vr(D,4)}, {vr(V_SEL,4)}, {vr(R+4,4)}, {vr(D,4)}")
        for i in range(4, 8):
            a.e(f"v_or_b32 {vr(V_S+i)}, {sr(S_C2)}, {vr(R+i)}")
        a.e(f"{M16} {vr(D,4)}, {vr(V_SEL,4)}, {vr(V_S,4)}, {vr(D,4)}")
        a.e(f"v_or3_b32 {vr(t0)}, {vr(R)}, {vr(R+1)}, {vr(R+2)}")
        a.e(f"v_or3_b32 {vr(t1)}, {vr(R+3)}, {vr(R+4)}, {vr(R+5)}")
        a.e(f"{M16} {vr(D,4)}, {vr(V_SEL,4)}, {vr(V_S+4,4)}, {vr(D,4)}")
        n0 = a.n
        a.e(f"v_or3_b32 {vr(t0)}, {vr(t0)}, {vr(R+6)}, {vr(R+7)}")
        a.e(f"v_or_b32 {vr(t0)}, {vr(t0)}, {vr(t1)}")
        a.e(f"v_and_b32 {vr(t0)}, {sr(S_C2)}, {vr(t0)}")
        a.e(f"v_cmp_ne_u32 vcc, 0, {vr(t0)}")
        a.e(f"s_cbranch_vccnz L_fslow{t}")
        a.label(f"L_fok{t}")
        a.gap(n0, 10)
        a.e(f"v_cvt_pk_bf16_f32 {vr(V_A+4+2*t)}, {vr(D)}, {vr(D+1)}")
        a.e(f"v_cvt_pk_bf16_f32 {vr(V_A+5+2*t)}, {vr(D+2)}, {vr(D+3)}")
        a.e("s_mov_b32 exec_hi, 0")
        a.e(f"buffer_store_dwordx2 {vr(V_A+4+2*t,2)}, {vr(V_OO)}, {sr(SRD_OUT,4)}, {sr(SO+t)} offen")
        a.e("s_mov_b64 exec, -1")
        if OPT["stamps"] == 4:
            stamp(a, t)
    stamp(a, 8)
    endpgm(a)
    for t in range(3):
        a.label(f"L_fslow{t}")
        a.e(f"s_sub_u32 {sr(S_CNT)}, {sr(S_CNT)}, 1")
        a.e(f"s_cbranch_scc1 L_fok{t}")
        for t2_ in range(t, 3):
            ld(t2_)
        if OPT["stamps"] == 4:
            stamp(a, 3 + t)
        if OPT["stamps"] == 5:
            stamp(a, 3)
        a.e("s_waitcnt vmcnt(0)")
        a.e(f"s_branch L_fin{t}")


def main():
    m = Asm()
    mfma_wave(m)
    a = Asm()
    a.e(f"s_cmp_ge_u32 s2, {NWG}")
    a.e("s_cbranch_scc1 L_exit")
    a.e(f"s_load_dwordx16 {sr(S_PTR,16)}, s[0:1], 0")
    a.e("v_lshrrev_b32 v2, 6, v0")
    a.e("v_and_b32 v1, 63, v0")
    a.e(f"v_readfirstlane_b32 {sr(S_W)}, v2")
    if OPT["stamps"]:
        for i in range(10):
            a.e(f"s_mov_b32 s{80+2*i}, 0")
        stamp(a, 9)
    a.e(f"s_and_b32 {sr(S_X)}, s2, 7")
    a.e(f"s_bfe_u32 {sr(S_HL)}, s2, 0x20003")
    a.e(f"s_lshr_b32 {sr(S_BP)}, s2, 5")
    a.e(f"s_cmp_lt_u32 {sr(S_W)}, 4")
    a.e("s_cbranch_scc1 L_mfma")
    helper_wave(a)
    a.l += m.l
    if OPT["stamps"]:
        stamp_out(a)
    a.label("L_exit")
    a.e("s_endpgm")
    a.label("L_end")
    out = HDR
    out += f"; @launch grid=({NWG},1,1) block=(512,1,1) lds=163840\n"
    out += f""".amdgcn_target "amdgcn-amd-amdhsa--gfx950"
.text
.globl {NAME}_kernel
.p2align 8
.type {NAME}_kernel,@function
{NAME}_kernel:
"""
    out += "\n".join(a.l) + "\n"
    out += f""".section .rodata,"a"
.p2align 6
.amdhsa_kernel {NAME}_kernel
  .amdhsa_next_free_vgpr 256
  .amdhsa_next_free_sgpr 102
  .amdhsa_accum_offset 256
  .amdhsa_group_segment_fixed_size 0
  .amdhsa_kernarg_size 64
  .amdhsa_user_sgpr_count 2
  .amdhsa_user_sgpr_kernarg_segment_ptr 1
  .amdhsa_system_sgpr_workgroup_id_x 1
.end_amdhsa_kernel
"""
    open(sys.argv[1], "w").write(out)
    print("free_at", {k[0]: v for k, v in FREE_AT.items()}, file=sys.stderr)


main()
```
